```python
import torch

def _softmax(x, axis=-1):
    return torch.softmax(x, dim=axis)
def _gelu(x):
    return torch.nn.functional.gelu(x, approximate="tanh")
def _silu(x):
    return torch.nn.functional.silu(x)
def _sigmoid(x):
    return torch.sigmoid(x)
def _layernorm(x, axis=-1, eps=1e-5):
    m = x.mean(dim=axis, keepdim=True)
    v = x.var(dim=axis, keepdim=True, unbiased=False)
    return (x - m) / torch.sqrt(v + eps)
def _scatter_add(tgt, idx, src, axis=0):
    return tgt.clone().index_add_(axis, idx, src)
def _segment_sum(src, seg, n):
    out = torch.zeros((n,) + src.shape[1:], dtype=src.dtype)
    return out.index_add_(0, seg, src)
def _pad(x, pw):
    flat = tuple(v for pair in reversed(pw) for v in pair)
    return torch.nn.functional.pad(x, flat)

kernel_name = 'standalone__self_sup_conv_stem_hubert__speech'

def setup_inputs():

    _w = (lambda a: (lambda t: t.to(torch.bfloat16) if t.is_floating_point() else t)(torch.as_tensor(a)))
    B, T, D, K = 2, 16000, 256, 15
    scale = (1.0 / (K * D)) ** 0.5
    return {
        "x": _w((lambda *s: torch.randn(*s, dtype=torch.bfloat16) * 0.05)(B, T, D)),
        "w": _w((lambda *s: torch.randn(*s, dtype=torch.bfloat16) * 0.05)(K, D, D) * scale),
        "b": _w((lambda *s: torch.randn(*s, dtype=torch.bfloat16) * 0.05)(D) * 0.1),
        "gamma": _w(torch.ones((D,), dtype=float)),
        "beta": _w(torch.zeros((D,), dtype=float)),
    }

def reference(x, w, b, gamma, beta):
    B, T, D = x.shape
    K = w.shape[0]
    s = 2
    L = (T - K) // s + 1
    y = torch.einsum('blc,cd->bld', x[:, 0 : s * L : s, :], w[0])
    for i in range(1, K):
        y = y + torch.einsum('blc,cd->bld', x[:, i : i + s * L : s, :], w[i])
    y = y + b[None, None, :]
    mu = y.mean(1, keepdims=True)
    var = ((y - mu) ** 2).mean(1, keepdims=True)
    yn = (y - mu) / torch.sqrt(var + 1e-5)
    yn = yn * gamma[None, None, :] + beta[None, None, :]
    return _gelu(yn)
```

```python
import sys, argparse

KN = "standalone__self_sup_conv_stem_hubert__speech_kernel"
X_BYTES = 2 * 16000 * 512
W_BYTES = 15 * 256 * 512
L = 7993
XBUF = 33792
CLS = 66 * 128
WSLOT = 16384

class G:
    def __init__(self, o):
        self.o = o
        self.l = []
        self.NS = o.ns
        self.WB = 2 * XBUF
        self.MISC = self.WB + self.NS * WSLOT
        self.LDS = self.MISC + 1024 + 512
        assert self.LDS <= 163840
    def e(self, s):
        self.l.append("    " + s)
    def lab(self, s):
        self.l.append(s + ":")
    def c(self, s):
        self.l.append("    ; " + s)
    def stamp(self, p):
        if not self.o.stamps: return
        b = 70 + 4 * p
        self.e(f"s_memrealtime s[{b}:{b+1}]")
        self.e(f"s_memtime s[{b+2}:{b+3}]")
        self.e("s_waitcnt lgkmcnt(0)")
    def stamp_init(self):
        if not self.o.stamps: return
        for r in range(70, 102, 2):
            self.e(f"s_mov_b64 s[{r}:{r+1}], 0")
    def stamp_flush(self):
        if not self.o.stamps: return
        self.e("s_waitcnt vmcnt(0) lgkmcnt(0)")
        self.e("s_lshl_b32 s56, s2, 3")
        self.e("s_add_u32 s56, s56, s3")
        self.e("s_lshl_b32 s56, s56, 7")
        self.e("s_add_u32 s56, s56, 0x100000")
        self.e("v_mov_b32 v10, s56")
        self.e("s_mov_b64 exec, 1")
        for p in range(8):
            b = 70 + 4 * p
            for k in range(4):
                self.e(f"v_mov_b32 v{12+k}, s{b+k}")
            self.e(f"buffer_store_dwordx4 v[12:15], v10, s[32:35], 0 offen offset:{16*p}")
            self.e("s_waitcnt vmcnt(0)")

ACC = 64
FR = 128
BR = 172
def acc(t): return f"v[{ACC+16*t}:{ACC+16*t+15}]"
def F(v): return f"v[{FR+4*v}:{FR+4*v+3}]"
def B(j): return f"v[{BR+4*j}:{BR+4*j+3}]"
def Bh(j, s): return f"v[{BR+4*j+2*s}:{BR+4*j+2*s+1}]"

def rdF(g, v):
    g.e(f"ds_read_b128 {F(v)}, v{4 + (v >> 2)} offset:{(v & 3) * CLS}")
def rdB(g, j, s):
    g.e(f"ds_read_b64_tr_b16 {Bh(j, s)}, v8 offset:{j * 2048 + s * 512}")
def rd(g, item):
    if item is None: return
    if item[0] == 'F': rdF(g, item[1])
    else: rdB(g, item[1], item[2])

def sched(J):
    base = {7: ('F', 0), 8: ('B', 0, 0), 9: ('B', 0, 1), 10: ('F', 1), 11: ('F', 2), 12: ('B', 1, 0), 13: ('B', 1, 1),
            14: ('F', 3), 15: ('B', 2, 0), 16: ('B', 2, 1), 17: ('F', 4), 18: ('B', 3, 0), 19: ('B', 3, 1),
            20: ('B', 4, 0), 21: ('F', 5), 22: ('B', 4, 1), 24: ('B', 5, 0), 25: ('B', 5, 1), 26: ('F', 6)}
    if J == 8:
        base.update({28: ('B', 6, 0), 29: ('B', 6, 1), 30: ('F', 7), 31: ('F', 8)})
        top = {0: ('F', 9), 1: ('B', 7, 0), 2: ('B', 7, 1), 3: ('F', 10)}
        n_after_f4 = 12
    else:
        base.update({27: ('F', 7)})
        top = {0: ('F', 8), 1: ('B', 6, 0), 2: ('B', 6, 1), 3: ('F', 9)}
        n_after_f4 = 9
    return top, base, n_after_f4

def addr_advance(g):
    g.e("s_add_u32 s60, s60, 1")
    g.e("s_add_u32 s61, s61, %d" % WSLOT)
    g.e("s_cmp_eq_u32 s61, %d" % (g.WB + g.NS * WSLOT))
    g.e("s_cselect_b32 s61, %d, s61" % g.WB)
    g.e("s_and_b32 s62, s60, 3")
    g.e("s_lshl_b32 s62, s62, 5")
    g.e("s_bitcmp1_b32 s60, 2")
    g.e("s_cselect_b32 s63, %d, 0" % XBUF)
    g.e("v_add_u32 v8, s61, v7")
    g.e("v_mov_b32 v9, s63")
    g.e("v_xad_u32 v4, v1, s62, v9")
    g.e("v_xad_u32 v5, v2, s62, v9")
    g.e("v_xad_u32 v6, v3, s62, v9")

def body(g, J, label, cnt_reg):
    o = g.o
    top, nxt, nw = sched(J)
    g.l.append(".p2align 6")
    g.lab(label)
    g.e(f"s_waitcnt lgkmcnt({nw})")
    gi = 0
    for j in range(J):
        for t in range(4):
            if not o.no_mfma:
                g.e(f"v_mfma_f32_32x32x16_bf16 {acc(t)}, {F(t + j)}, {B(j)}, {acc(t)}")
            if gi in top and not o.no_read: rd(g, top[gi])
            if gi == 4:
                g.e("s_add_u32 s60, s60, 1")
                g.e("s_add_u32 s61, s61, %d" % WSLOT)
                g.e("s_cmp_eq_u32 s61, %d" % (g.WB + g.NS * WSLOT))
                g.e("s_cselect_b32 s61, %d, s61" % g.WB)
            if gi == 5:
                g.e("s_and_b32 s62, s60, 3")
                g.e("s_lshl_b32 s62, s62, 5")
                g.e("s_bitcmp1_b32 s60, 2")
                g.e("s_cselect_b32 s63, %d, 0" % XBUF)
                g.e("v_mov_b32 v9, s63")
            if gi == 6:
                g.e("v_add_u32 v8, s61, v7")
                g.e("v_xad_u32 v4, v1, s62, v9")
                g.e("v_xad_u32 v5, v2, s62, v9")
                g.e("v_xad_u32 v6, v3, s62, v9")
            if gi == 7:
                g.e("s_waitcnt lgkmcnt(0)")
                if not o.no_bar: g.e("s_barrier")
            if gi in nxt and not o.no_read: rd(g, nxt[gi])
            if gi == 4 * J - 2:
                g.e(f"s_sub_u32 {cnt_reg}, {cnt_reg}, 1")
                g.e(f"s_cmp_lg_u32 {cnt_reg}, 0")
            gi += 1
    g.e(f"s_cbranch_scc1 {label}")

def bar(g):
    if not g.o.no_bar: g.e("s_barrier")

def w_issue(g, J):
    if g.o.no_dma: return
    g.e("s_mov_b32 s66, s64")
    g.e("s_mov_b32 m0, s65")
    for j in range(J):
        if j:
            g.e("s_add_u32 m0, m0, 2048")
            g.e("s_add_u32 s66, s66, 262144")
        else:
            g.e("s_nop 0")
        g.e("buffer_load_dwordx4 v1, s[24:27], s66 offen lds")

def w_next(g):
    g.e("s_add_u32 s64, s64, 8192")
    g.e("s_add_u32 s65, s65, %d" % WSLOT)
    g.e("s_cmp_ge_u32 s65, %d" % (g.WB + g.NS * WSLOT))
    g.e("s_cselect_b32 s67, %d, 0" % (g.NS * WSLOT))
    g.e("s_sub_u32 s65, s65, s67")

def x_issue(g):
    if g.o.no_dma: return
    g.e("s_mov_b32 m0, s65")
    g.e("s_nop 0")
    for k in range(16):
        g.e(f"buffer_load_dwordx4 v{10+k}, s[20:23], s64 offen lds")
        g.e("s_add_u32 m0, m0, 2048")
        g.e("s_nop 0")
    lab = f"L_x17_{len(g.l)}"
    g.e("s_cmp_lg_u32 s3, 6")
    g.e(f"s_cbranch_scc1 {lab}")
    g.e("buffer_load_dwordx4 v26, s[20:23], s64 offen lds")
    g.lab(lab)

def gen(o):
    g = G(o)
    NS = g.NS
    e = g.e
    hdr = f"""; Fused strided conv1d (implicit GEMM, bf16 MFMA) + per-channel GroupNorm over time + tanh-GELU.
; @launch grid=(256,1,1) block=(512,1,1) lds={g.LDS}
.amdgcn_target "amdgcn-amd-amdhsa--gfx950"
.text
.globl {KN}
.p2align 8
.type {KN},@function
{KN}:"""
    g.l.append(hdr)
    e("s_cmp_ge_u32 s2, 256")
    e("s_cbranch_scc1 L_end")
    e("s_load_dwordx16 s[4:19], s[0:1], 0")
    g.stamp_init()
    g.stamp(0)
    e("v_lshrrev_b32 v1, 6, v0")
    e("v_and_b32 v0, 63, v0")
    e("v_readfirstlane_b32 s3, v1")
    e("s_and_b32 s56, s2, 7")
    e("s_lshr_b32 s57, s2, 3")
    e("s_and_b32 s54, s57, 3")
    e("s_lshr_b32 s57, s57, 2")
    e("s_lshl_b32 s58, s56, 3")
    e("s_add_u32 s58, s58, s57")
    e("s_lshr_b32 s52, s58, 5")
    e("s_and_b32 s53, s58, 31")
    e("s_lshl_b32 s55, s53, 8")
    e("s_mul_i32 s56, s52, 8192000")
    e("s_lshl_b32 s57, s55, 10")
    e("s_add_u32 s56, s56, s57")
    e("s_lshl_b32 s59, s54, 7")
    e("s_waitcnt lgkmcnt(0)")
    e("s_add_u32 s20, s4, s56")
    e("s_addc_u32 s21, s5, 0")
    e(f"s_sub_u32 s22, {X_BYTES}, s56")
    e("s_mov_b32 s23, 0x20000")
    e("s_add_u32 s24, s6, s59")
    e("s_addc_u32 s25, s7, 0")
    e(f"s_sub_u32 s26, {W_BYTES}, s59")
    e("s_mov_b32 s27, 0x20000")
    e(f"s_mul_i32 s56, s52, {L}")
    e("s_add_u32 s56, s56, s55")
    e("s_lshl_b32 s56, s56, 9")
    e("s_add_u32 s28, s14, s56")
    e("s_addc_u32 s29, s15, 0")
    e(f"s_sub_u32 s30, {L}, s55")
    e("s_lshl_b32 s30, s30, 9")
    e("s_mov_b32 s31, 0x20000")
    e("s_mov_b32 s32, s18")
    e("s_mov_b32 s33, s19")
    e("s_mov_b32 s34, 0x200000")
    e("s_mov_b32 s35, 0x20000")
    e("s_mov_b32 s36, s16")
    e("s_mov_b32 s37, s17")
    e("s_mov_b32 s38, 256")
    e("s_mov_b32 s39, 0x20000")
    for k, p in ((40, 8), (44, 10), (48, 12)):
        e(f"s_mov_b32 s{k}, s{p}")
        e(f"s_mov_b32 s{k+1}, s{p+1}")
        e(f"s_mov_b32 s{k+2}, 512")
        e(f"s_mov_b32 s{k+3}, 0x20000")
    e("s_lshl_b32 s68, s52, 2")
    e("s_add_u32 s68, s68, s54")
    e("s_lshl_b32 s68, s68, 14")
    e("s_lshl_b32 s69, s53, 9")
    e("s_add_u32 s69, s69, s68")
    e("s_cmp_ge_u32 s3, 6")
    e("s_cbranch_scc1 L_xload")
    e("s_cmp_ge_u32 s3, 4")
    e("s_cbranch_scc1 L_wload")

    g.c("compute wave setup")
    e("s_lshr_b32 s56, s3, 1")
    e("s_and_b32 s57, s3, 1")
    e("v_and_b32 v10, 31, v0")
    e("v_lshrrev_b32 v11, 5, v0")
    e("s_lshl_b32 s58, s57, 6")
    e("s_add_u32 s58, s58, s59")
    e("v_lshl_add_u32 v12, v10, 1, s58")
    e("buffer_load_ushort v13, v12, s[40:43], 0 offen")
    e("s_lshl_b32 s58, s56, 5")
    for a in range(3):
        e(f"v_add_u32 v14, s58, v10")
        if a: e(f"v_add_u32 v14, {a}, v14")
        e("v_bfe_u32 v15, v14, 1, 3")
        e("v_xor_b32 v15, v15, v11")
        e("v_lshlrev_b32 v15, 4, v15")
        e(f"v_lshl_add_u32 v{1+a}, v14, 7, v15")
    e("v_and_b32 v14, 15, v0")
    e("v_lshrrev_b32 v15, 2, v14")
    e("v_lshl_add_u32 v15, v11, 3, v15")
    e("v_bfe_u32 v16, v0, 4, 1")
    e("v_lshlrev_b32 v16, 1, v16")
    e("v_bfe_u32 v17, v0, 1, 1")
    e("v_add_u32 v16, v16, v17")
    e("s_lshl_b32 s58, s57, 2")
    e("v_add_u32 v16, s58, v16")
    e("v_bfe_u32 v17, v0, 3, 1")
    e("v_lshlrev_b32 v17, 2, v17")
    e("v_xor_b32 v16, v16, v17")
    e("v_lshlrev_b32 v16, 4, v16")
    e("v_lshl_add_u32 v7, v15, 7, v16")
    e("v_and_b32 v17, 1, v0")
    e("v_lshl_add_u32 v7, v17, 3, v7")
    e("v_mov_b32 v4, v1")
    e("v_mov_b32 v5, v2")
    e("v_mov_b32 v6, v3")
    e(f"v_add_u32 v8, {g.WB}, v7")
    e("s_mov_b32 s60, 0")
    e(f"s_mov_b32 s61, {g.WB}")
    e("s_waitcnt vmcnt(0)")
    e("v_lshlrev_b32 v13, 16, v13")
    for r in range(64):
        e(f"v_mov_b32 v{ACC+r}, v13")
    if o.prio: e(f"s_setprio {o.prio}")
    bar(g)
    g.stamp(1)
    top, nxt, _ = sched(8)
    if not o.no_read:
        for gi in sorted(nxt): rd(g, nxt[gi])
    e("s_mov_b32 s64, 16")
    body(g, 8, "L_even", "s64")
    e("s_mov_b32 s64, 16")
    body(g, 7, "L_odd", "s64")
    e("s_waitcnt lgkmcnt(0)")
    g.stamp(2)
    g.c("per-channel partial sums")
    e("s_cmp_eq_u32 s53, 31")
    e("s_cbranch_scc1 L_stat_tail")
    e("s_nop 7")
    for k in range(4):
        r = ACC + 2 * k
        e(f"v_pk_mul_f32 v[{18+2*k}:{19+2*k}], v[{r}:{r+1}], v[{r}:{r+1}]")
    for k in range(4):
        r = ACC + 8 + 2 * k
        e(f"v_pk_add_f32 v[{10+2*k}:{11+2*k}], v[{r-8}:{r-7}], v[{r}:{r+1}]")
        e(f"v_pk_fma_f32 v[{18+2*k}:{19+2*k}], v[{r}:{r+1}], v[{r}:{r+1}], v[{18+2*k}:{19+2*k}]")
    for m in range(2, 8):
        for k in range(4):
            r = ACC + 8 * m + 2 * k
            e(f"v_pk_add_f32 v[{10+2*k}:{11+2*k}], v[{10+2*k}:{11+2*k}], v[{r}:{r+1}]")
            e(f"v_pk_fma_f32 v[{18+2*k}:{19+2*k}], v[{r}:{r+1}], v[{r}:{r+1}], v[{18+2*k}:{19+2*k}]")
    e("v_pk_add_f32 v[10:11], v[10:11], v[12:13]")
    e("v_pk_add_f32 v[18:19], v[18:19], v[20:21]")
    e("v_pk_add_f32 v[14:15], v[14:15], v[16:17]")
    e("v_pk_add_f32 v[22:23], v[22:23], v[24:25]")
    e("v_pk_add_f32 v[10:11], v[10:11], v[14:15]")
    e("v_pk_add_f32 v[18:19], v[18:19], v[22:23]")
    e("v_add_f32 v10, v10, v11")
    e("v_add_f32 v11, v18, v19")
    e("s_branch L_stat_join")
    g.lab("L_stat_tail")
    e("s_nop 7")
    e("v_mov_b32 v10, 0")
    e("v_mov_b32 v11, 0")
    e("s_cmp_ge_u32 s3, 2")
    e("s_cbranch_scc1 L_stat_join")
    def accum(r):
        e(f"v_add_f32 v10, v10, v{r}")
        e(f"v_fmac_f32 v11, v{r}, v{r}")
    for t in range(4):
        for r in range(6): accum(ACC + 16 * t + r)
    e("s_mov_b32 exec_lo, -1")
    e("s_mov_b32 exec_hi, 0")
    for t in range(4):
        for r in (6, 7): accum(ACC + 16 * t + r)
    e("s_mov_b32 exec_lo, 0")
    e("s_mov_b32 exec_hi, -1")
    accum(ACC + 6)
    e("s_mov_b64 exec, -1")
    g.lab("L_stat_join")
    e("s_lshr_b32 s56, s3, 1")
    e("s_and_b32 s57, s3, 1")
    e("s_lshl_b32 s58, s56, 9")
    e("s_lshl_b32 s62, s57, 8")
    e("s_add_u32 s58, s58, s62")
    e(f"s_add_u32 s58, s58, {g.MISC}")
    e("v_and_b32 v12, 31, v0")
    e("v_lshrrev_b32 v13, 5, v0")
    e("v_permlane32_swap_b32 v10, v11")
    e("v_lshl_add_u32 v14, v12, 3, s58")
    e("v_lshl_add_u32 v14, v13, 2, v14")
    e("v_add_f32 v10, v10, v11")
    e("ds_write_b32 v14, v10")
    e("s_mul_i32 s58, s56, %d" % (128 * 272))
    e("s_lshl_b32 s62, s57, 7")
    e("s_add_u32 s58, s58, s62")
    e("v_lshl_add_u32 v15, v12, 2, s58")
    e("v_mul_u32_u24 v13, %d, v13" % (16 * 272))
    e("v_add_u32 v15, v15, v13")
    e("s_waitcnt lgkmcnt(0)")
    e("s_barrier")
    for t in range(4):
        for r in range(16):
            row = t + 4 * (8 * (r >> 2) + (r & 3))
            e(f"ds_write_b32 v15, v{ACC+16*t+r} offset:{row*272}")
    e("s_waitcnt lgkmcnt(0)")
    e("s_barrier")
    g.stamp(3)
    e("s_branch L_final_rd")

    g.lab("L_xload")
    e("s_sub_u32 s56, s3, 6")
    e("v_lshrrev_b32 v1, 3, v0")
    e("v_and_b32 v2, 7, v0")
    e("s_lshl_b32 s57, s56, 3")
    e("v_add_u32 v1, s57, v1")
    e("s_movk_i32 s58, 993")
    for k in range(17):
        e(f"v_add_u32 v3, {16*k}, v1")
        e("v_mul_u32_u24 v4, s58, v3")
        e("v_lshrrev_b32 v4, 16, v4")
        e("v_mul_u32_u24 v5, 66, v4")
        e("v_sub_u32 v5, v3, v5")
        e("v_lshl_add_u32 v6, v5, 2, v4")
        e("v_bfe_u32 v5, v5, 1, 3")
        e("v_xor_b32 v5, v5, v2")
        e("v_lshlrev_b32 v5, 4, v5")
        e(f"v_lshl_add_u32 v{10+k}, v6, 10, v5")
    e("s_mov_b32 s64, 0")
    e("s_lshl_b32 s65, s56, 10")
    x_issue(g)
    e("s_mov_b32 s64, 128")
    e(f"s_add_u32 s65, s65, {XBUF}")
    x_issue(g)
    e("s_cmp_lg_u32 s3, 7")
    e("s_cbranch_scc1 L_noclean")
    e("v_lshl_add_u32 v3, v0, 3, s69")
    e("v_mov_b32 v4, -1")
    e("v_mov_b32 v5, -1")
    e("buffer_store_dwordx2 v[4:5], v3, s[32:35], 0 offen sc1")
    g.lab("L_noclean")
    e("s_waitcnt vmcnt(17)")
    bar(g)
    g.stamp(1)
    e("s_mov_b32 s60, 0")
    g.lab("L_xloop")
    e("s_cmp_eq_u32 s60, 0")
    e("s_cbranch_scc1 L_xskip")
    e("s_cmp_eq_u32 s60, 7")
    e("s_cbranch_scc1 L_xskip")
    e("s_add_u32 s61, s60, 1")
    e("s_and_b32 s64, s61, 3")
    e("s_lshl_b32 s64, s64, 7")
    e("s_lshr_b32 s62, s61, 2")
    e("s_lshl_b32 s62, s62, 9")
    e("s_add_u32 s64, s64, s62")
    e("s_bitcmp1_b32 s61, 0")
    e(f"s_cselect_b32 s65, {XBUF}, 0")
    e("s_lshl_b32 s62, s56, 10")
    e("s_add_u32 s65, s65, s62")
    x_issue(g)
    e("s_cmp_lg_u32 s60, 1")
    e("s_cbranch_scc1 L_xskip")
    e("s_cmp_lg_u32 s3, 7")
    e("s_cbranch_scc1 L_xskip")
    g.c("slot cleaned (vmcnt(0) passed before Bar_4): count it")
    e("s_mov_b64 exec, 1")
    e("v_mov_b32 v3, 0")
    e("v_mov_b32 v4, 1")
    e("buffer_atomic_add v4, v3, s[36:39], 0 offen sc1")
    e("s_mov_b64 exec, -1")
    g.lab("L_xskip")
    bar(g); bar(g); bar(g)
    e("s_waitcnt vmcnt(0)")
    bar(g)
    e("s_add_u32 s60, s60, 1")
    e("s_cmp_lt_u32 s60, 8")
    e("s_cbranch_scc1 L_xloop")
    g.stamp(2)
    e("s_barrier")
    e("s_barrier")
    e("s_branch L_final_rd")

    g.lab("L_wload")
    e("s_sub_u32 s56, s3, 4")
    e("v_lshrrev_b32 v2, 3, v0")
    e("v_and_b32 v3, 7, v0")
    e("v_bfe_u32 v4, v0, 4, 1")
    e("v_lshlrev_b32 v4, 2, v4")
    e("v_xor_b32 v3, v3, v4")
    e("v_lshlrev_b32 v3, 4, v3")
    e("v_lshl_add_u32 v1, v2, 9, v3")
    e("s_lshl_b32 s57, s56, 12")
    e("v_add_u32 v1, s57, v1")
    e("s_mov_b32 s64, 0")
    e("s_lshl_b32 s65, s56, 10")
    e(f"s_add_u32 s65, s65, {g.WB}")
    e(f"s_mov_b32 s60, {NS-1}")
    g.lab("L_wpro")
    w_issue(g, 8); w_next(g)
    e("s_sub_u32 s60, s60, 1")
    e("s_cmp_lg_u32 s60, 0")
    e("s_cbranch_scc1 L_wpro")
    e(f"s_waitcnt vmcnt({8*(NS-2)})")
    bar(g)
    g.stamp(1)
    e(f"s_mov_b32 s60, {17-NS}")
    g.lab("L_wA")
    w_issue(g, 8); w_next(g)
    e(f"s_waitcnt vmcnt({8*(NS-2)})")
    bar(g)
    e("s_sub_u32 s60, s60, 1")
    e("s_cmp_lg_u32 s60, 0")
    e("s_cbranch_scc1 L_wA")
    e("s_mov_b32 s64, 131072")
    e("s_mov_b32 s60, 16")
    g.lab("L_wB")
    w_issue(g, 7); w_next(g)
    e(f"s_waitcnt vmcnt({7*(NS-2)})")
    bar(g)
    e("s_sub_u32 s60, s60, 1")
    e("s_cmp_lg_u32 s60, 0")
    e("s_cbranch_scc1 L_wB")
    for k in range(33 - NS, 32):
        n = max(0, 31 - (k + 1)) * 7
        if k < 31: e(f"s_waitcnt vmcnt({n})")
        if k == 30:
            e("v_and_b32 v2, 31, v0")
            e("v_lshrrev_b32 v3, 5, v0")
            e("v_lshl_add_u32 v2, v2, 1, v3")
            e("v_lshl_add_u32 v3, v2, 1, s59")
            e("buffer_load_ushort v4, v3, s[44:47], 0 offen")
            e("buffer_load_ushort v5, v3, s[48:51], 0 offen")
            e("v_mov_b32 v6, 0")
            e("buffer_load_dword v7, v6, s[36:39], 0 offen sc1")
        bar(g)
    g.stamp(2)
    e("s_cmp_lg_u32 s3, 4")
    e("s_cbranch_scc1 L_w5")
    e("s_mov_b32 s60, 0")
    g.lab("L_chk")
    e("s_waitcnt vmcnt(0)")
    e("v_readfirstlane_b32 s61, v7")
    e("s_cmp_ge_u32 s61, 256")
    e("s_cbranch_scc1 L_chk_ok")
    e("s_add_u32 s60, s60, 1")
    e("s_cmp_ge_u32 s60, 0x100000")
    e("s_cbranch_scc1 L_chk_ok")
    e("s_sleep 2")
    e("buffer_load_dword v7, v6, s[36:39], 0 offen sc1")
    e("s_branch L_chk")
    g.lab("L_chk_ok")
    e(f"v_lshlrev_b32 v8, 3, v0")
    e(f"v_add_u32 v9, {g.MISC}, v8")
    e("v_add_u32 v8, s69, v8")
    e("v_lshl_add_u32 v6, v0, 4, s68")
    e("s_movk_i32 s61, 0x1000")
    e("s_movk_i32 s62, 0x2000")
    e("s_movk_i32 s63, 0x3000")
    e("v_lshlrev_b32 v4, 16, v4")
    e("v_lshlrev_b32 v5, 16, v5")
    e("s_barrier")
    e("ds_read_b64 v[10:11], v9")
    e("ds_read_b64 v[12:13], v9 offset:512")
    e("s_waitcnt lgkmcnt(0)")
    e("v_add_f32 v10, v10, v12")
    e("v_add_f32 v11, v11, v13")
    e("v_and_b32 v11, 0x7fffffff, v11")
    e(f"buffer_store_dwordx2 v[10:11], v8, s[32:35], 0 offen {o.st_flags}")
    g.stamp(3)
    GR = 128
    def gather_loads():
        for u in range(16):
            so = ["0", "s61", "s62", "s63"][u >> 2]
            e(f"buffer_load_dwordx4 v[{GR+4*u}:{GR+4*u+3}], v6, s[32:35], {so} offen offset:{(u&3)*1024} {o.ld_flags}")
    gather_loads()
    e("s_barrier")
    e("s_mov_b32 s60, 0")
    g.lab("L_poll")
    e("s_waitcnt vmcnt(0)")
    e(f"v_or_b32 v14, v{GR+1}, v{GR+3}")
    for u in range(1, 16):
        e(f"v_or3_b32 v14, v14, v{GR+4*u+1}, v{GR+4*u+3}")
    e("v_cmp_gt_i32 vcc, 0, v14")
    e("s_cbranch_vccz L_poll_ok")
    e("s_add_u32 s60, s60, 1")
    e("s_cmp_ge_u32 s60, 0x40000")
    e("s_cbranch_scc1 L_poll_ok")
    gather_loads()
    e("s_branch L_poll")
    g.lab("L_poll_ok")
    g.stamp(4)
    for u in range(1, 16):
        d = GR + 4 * (u & 1)
        if u == 1: continue
        e(f"v_pk_add_f32 v[{d}:{d+1}], v[{d}:{d+1}], v[{GR+4*u}:{GR+4*u+1}]")
        e(f"v_pk_add_f32 v[{d+2}:{d+3}], v[{d+2}:{d+3}], v[{GR+4*u+2}:{GR+4*u+3}]")
    e(f"v_pk_add_f32 v[{GR}:{GR+1}], v[{GR}:{GR+1}], v[{GR+4}:{GR+5}]")
    e(f"v_pk_add_f32 v[{GR+2}:{GR+3}], v[{GR+2}:{GR+3}], v[{GR+6}:{GR+7}]")
    e("s_mov_b32 s61, 0x%08x" % f2u(1.0 / L))
    e("s_nop 0")
    e(f"v_permlane32_swap_b32 v{GR}, v{GR+2}")
    e(f"v_permlane32_swap_b32 v{GR+1}, v{GR+3}")
    e(f"v_add_f32 v10, v{GR}, v{GR+2}")
    e(f"v_add_f32 v11, v{GR+1}, v{GR+3}")
    e("v_mul_f32 v10, s61, v10")
    e("v_mul_f32 v11, s61, v11")
    e("v_fma_f32 v11, -v10, v10, v11")
    e("v_max_f32 v11, 0, v11")
    e("v_add_f32 v11, 0x%08x, v11" % f2u(1e-5))
    e("v_rsq_f32 v11, v11")
    e(f"v_lshlrev_b32 v12, 2, v2")
    e(f"v_add_u32 v12, {g.MISC + 1024}, v12")
    e("v_mul_f32 v11, v4, v11")
    e("v_fma_f32 v10, -v10, v11, v5")
    e("ds_write_b32 v12, v11")
    e("ds_write_b32 v12, v10 offset:256")
    e("s_branch L_final_rd")
    g.lab("L_w5")
    e("s_barrier")
    e("s_barrier")

    g.lab("L_final_rd")
    Y = 64
    e("v_lshrrev_b32 v20, 3, v0")
    e("s_lshl_b32 s56, s3, 5")
    e("v_add_u32 v20, s56, v20")
    e("v_and_b32 v21, 7, v0")
    e("v_mul_u32_u24 v22, 272, v20")
    e("v_lshl_add_u32 v22, v21, 5, v22")
    for rg in range(4):
        e(f"ds_read_b128 v[{Y+8*rg}:{Y+8*rg+3}], v22 offset:{rg*8*272}")
        e(f"ds_read_b128 v[{Y+8*rg+4}:{Y+8*rg+7}], v22 offset:{rg*8*272+16}")
    e("v_lshlrev_b32 v23, 9, v20")
    e("v_lshl_add_u32 v23, v21, 4, v23")
    e("v_add_u32 v23, s59, v23")
    e(f"v_lshlrev_b32 v24, 5, v21")
    e(f"v_add_u32 v24, {g.MISC + 1024}, v24")
    K1 = -2.0 * 0.7978845608028654 * 1.4426950408889634
    K2 = K1 * 0.044715
    e("s_mov_b32 s60, 0x%08x" % f2u(K1)); e("s_mov_b32 s61, 0x%08x" % f2u(K1))
    e("v_mov_b32 v26, 0x%08x" % f2u(K2)); e("v_mov_b32 v27, 0x%08x" % f2u(K2))
    e("s_waitcnt lgkmcnt(0)")
    e("s_barrier")
    g.stamp(5)
    e("ds_read_b128 v[32:35], v24")
    e("ds_read_b128 v[36:39], v24 offset:16")
    e("ds_read_b128 v[40:43], v24 offset:256")
    e("ds_read_b128 v[44:47], v24 offset:272")
    e("s_waitcnt lgkmcnt(0)")
    for rg in range(4):
        y = Y + 8 * rg
        P = 96 + 8 * rg
        for k in range(4):
            e(f"v_pk_fma_f32 v[{y+2*k}:{y+2*k+1}], v[{y+2*k}:{y+2*k+1}], v[{32+2*k}:{33+2*k}], v[{40+2*k}:{41+2*k}]")
        for k in range(4):
            e(f"v_pk_mul_f32 v[{P+2*k}:{P+2*k+1}], v[{y+2*k}:{y+2*k+1}], v[{y+2*k}:{y+2*k+1}]")
        for k in range(4):
            e(f"v_pk_fma_f32 v[{P+2*k}:{P+2*k+1}], v[{P+2*k}:{P+2*k+1}], v[26:27], s[60:61]")
        for k in range(4):
            e(f"v_pk_mul_f32 v[{P+2*k}:{P+2*k+1}], v[{P+2*k}:{P+2*k+1}], v[{y+2*k}:{y+2*k+1}]")
        for k in range(8):
            e(f"v_exp_f32 v{P+k}, v{P+k}")
        for k in range(4):
            e(f"v_pk_add_f32 v[{P+2*k}:{P+2*k+1}], v[{P+2*k}:{P+2*k+1}], 1.0 op_sel_hi:[1,0]")
        for k in range(8):
            e(f"v_rcp_f32 v{P+k}, v{P+k}")
        for k in range(4):
            e(f"v_pk_mul_f32 v[{y+2*k}:{y+2*k+1}], v[{y+2*k}:{y+2*k+1}], v[{P+2*k}:{P+2*k+1}]")
        for k in range(4):
            e(f"v_cvt_pk_bf16_f32 v{48+4*rg+k}, v{y+2*k}, v{y+2*k+1}")
        e(f"buffer_store_dwordx4 v[{48+4*rg}:{51+4*rg}], v23, s[28:31], 0 offen")
        if rg < 3: e("v_add_u32 v23, 4096, v23")
    g.stamp(6)
    if o.stamps:
        e("s_waitcnt vmcnt(0)")
        g.stamp(7)
    g.stamp_flush()
    g.lab("L_end")
    e("s_endpgm")
    g.l.append(f""".section .rodata,"a"
.p2align 6
.amdhsa_kernel {KN}
  .amdhsa_next_free_vgpr 208
  .amdhsa_next_free_sgpr 102
  .amdhsa_accum_offset 208
  .amdhsa_group_segment_fixed_size 0
  .amdhsa_kernarg_size 64
  .amdhsa_user_sgpr_count 2
  .amdhsa_user_sgpr_kernarg_segment_ptr 1
  .amdhsa_system_sgpr_workgroup_id_x 1
.end_amdhsa_kernel""")
    return "\n".join(g.l) + "\n"

import struct
def f2u(x): return struct.unpack("<I", struct.pack("<f", x))[0]

if __name__ == "__main__":
    ap = argparse.ArgumentParser()
    ap.add_argument("-o", default="k.s")
    ap.add_argument("--ns", type=int, default=5)
    ap.add_argument("--stamps", action="store_true")
    ap.add_argument("--no-mfma", action="store_true")
    ap.add_argument("--no-read", action="store_true")
    ap.add_argument("--no-dma", action="store_true")
    ap.add_argument("--no-bar", action="store_true")
    ap.add_argument("--prio", type=int, default=0)
    ap.add_argument("--st-flags", default="sc1")
    ap.add_argument("--ld-flags", default="sc1")
    o = ap.parse_args()
    open(o.o, "w").write(gen(o))
```

```python
import sys, argparse

KN = "standalone__self_sup_conv_stem_hubert__speech_kernel"
X_BYTES = 2 * 16000 * 512
W_BYTES = 15 * 256 * 512
L = 7993
XBUF = 33792
CLS = 66 * 128
WSLOT = 16384

class G:
    def __init__(self, o):
        self.o = o
        self.l = []
        self.NS = o.ns
        self.WB = 2 * XBUF
        self.MISC = self.WB + self.NS * WSLOT
        self.LDS = self.MISC + 1024 + 512
        assert self.LDS <= 163840
    def e(self, s):
        self.l.append("    " + s)
    def lab(self, s):
        self.l.append(s + ":")
    def c(self, s):
        self.l.append("    ; " + s)
    def stamp(self, p):
        if not self.o.stamps: return
        b = 70 + 4 * p
        self.e(f"s_memrealtime s[{b}:{b+1}]")
        self.e(f"s_memtime s[{b+2}:{b+3}]")
        self.e("s_waitcnt lgkmcnt(0)")
    def stamp_init(self):
        if not self.o.stamps: return
        for r in range(70, 102, 2):
            self.e(f"s_mov_b64 s[{r}:{r+1}], 0")
    def stamp_flush(self):
        if not self.o.stamps: return
        if self.o.dbgstamps:
            self.e("s_waitcnt vmcnt(0) lgkmcnt(0)")
            self.e("s_mov_b64 exec, 1")
            self.e("v_mov_b32 v10, 0")
            self.e("s_not_b32 s56, s70")
            self.e("v_mov_b32 v11, s56")
            self.e("buffer_atomic_umax v11, v10, s[36:39], 0 offen offset:4 sc1")
            self.e("v_mov_b32 v12, s70")
            self.e("buffer_atomic_umax v12, v10, s[36:39], 0 offen offset:40 sc1")
            for p in range(1, 8):
                self.e(f"v_mov_b32 v{12+p}, s{70+4*p}")
                self.e(f"buffer_atomic_umax v{12+p}, v10, s[36:39], 0 offen offset:{4+4*p} sc1")
            self.e("s_sub_u32 s56, s100, s72")
            self.e("v_mov_b32 v20, s56")
            self.e("buffer_atomic_umax v20, v10, s[36:39], 0 offen offset:36 sc1")
            self.e("s_waitcnt vmcnt(0)")
            return
        self.e("s_waitcnt vmcnt(0) lgkmcnt(0)")
        self.e("s_lshl_b32 s56, s2, 3")
        self.e("s_add_u32 s56, s56, s3")
        self.e("s_lshl_b32 s56, s56, 7")
        self.e("s_add_u32 s56, s56, 0x100000")
        self.e("v_mov_b32 v10, s56")
        self.e("s_mov_b64 exec, 1")
        for p in range(8):
            b = 70 + 4 * p
            for k in range(4):
                self.e(f"v_mov_b32 v{12+k}, s{b+k}")
            self.e(f"buffer_store_dwordx4 v[12:15], v10, s[32:35], 0 offen offset:{16*p}")
            self.e("s_waitcnt vmcnt(0)")

ACC = 64
FR = 128
BR = 172
def acc(t): return f"v[{ACC+16*t}:{ACC+16*t+15}]"
def F(v): return f"v[{FR+4*v}:{FR+4*v+3}]"
def B(j): return f"v[{BR+4*j}:{BR+4*j+3}]"
def Bh(j, s): return f"v[{BR+4*j+2*s}:{BR+4*j+2*s+1}]"

def rdF(g, v):
    g.e(f"ds_read_b128 {F(v)}, v{4 + (v >> 2)} offset:{(v & 3) * CLS}")
def rdB(g, j, s):
    g.e(f"ds_read_b64_tr_b16 {Bh(j, s)}, v8 offset:{j * 2048 + s * 512}")
def rd(g, item):
    if item is None: return
    if item[0] == 'F': rdF(g, item[1])
    else: rdB(g, item[1], item[2])

def sched(J):
    base = {7: ('F', 0), 8: ('B', 0, 0), 9: ('B', 0, 1), 10: ('F', 1), 11: ('F', 2), 12: ('B', 1, 0), 13: ('B', 1, 1),
            14: ('F', 3), 15: ('B', 2, 0), 16: ('B', 2, 1), 17: ('F', 4), 18: ('B', 3, 0), 19: ('B', 3, 1),
            20: ('B', 4, 0), 21: ('F', 5), 22: ('B', 4, 1), 24: ('B', 5, 0), 25: ('B', 5, 1), 26: ('F', 6)}
    if J == 8:
        base.update({28: ('B', 6, 0), 29: ('B', 6, 1), 30: ('F', 7), 31: ('F', 8)})
        top = {0: ('F', 9), 1: ('B', 7, 0), 2: ('B', 7, 1), 3: ('F', 10)}
        n_after_f4 = 12
    else:
        base.update({27: ('F', 7)})
        top = {0: ('F', 8), 1: ('B', 6, 0), 2: ('B', 6, 1), 3: ('F', 9)}
        n_after_f4 = 9
    return top, base, n_after_f4

def addr_advance(g):
    g.e("s_add_u32 s60, s60, 1")
    g.e("s_add_u32 s61, s61, %d" % WSLOT)
    g.e("s_cmp_eq_u32 s61, %d" % (g.WB + g.NS * WSLOT))
    g.e("s_cselect_b32 s61, %d, s61" % g.WB)
    g.e("s_and_b32 s62, s60, 3")
    g.e("s_lshl_b32 s62, s62, 5")
    g.e("s_bitcmp1_b32 s60, 2")
    g.e("s_cselect_b32 s63, %d, 0" % XBUF)
    g.e("v_add_u32 v8, s61, v7")
    g.e("v_mov_b32 v9, s63")
    g.e("v_xad_u32 v4, v1, s62, v9")
    g.e("v_xad_u32 v5, v2, s62, v9")
    g.e("v_xad_u32 v6, v3, s62, v9")

def body(g, J, label, cnt_reg):
    o = g.o
    top, nxt, nw = sched(J)
    g.l.append(".p2align 6")
    g.lab(label)
    g.e(f"s_waitcnt lgkmcnt({nw})")
    gi = 0
    for j in range(J):
        for t in range(4):
            if not o.no_mfma:
                g.e(f"v_mfma_f32_32x32x16_bf16 {acc(t)}, {F(t + j)}, {B(j)}, {acc(t)}")
            if gi in top and not o.no_read: rd(g, top[gi])
            if gi == 4:
                g.e("s_add_u32 s60, s60, 1")
                g.e("s_add_u32 s61, s61, %d" % WSLOT)
                g.e("s_cmp_eq_u32 s61, %d" % (g.WB + g.NS * WSLOT))
                g.e("s_cselect_b32 s61, %d, s61" % g.WB)
            if gi == 5:
                g.e("s_and_b32 s62, s60, 3")
                g.e("s_lshl_b32 s62, s62, 5")
                g.e("s_bitcmp1_b32 s60, 2")
                g.e("s_cselect_b32 s63, %d, 0" % XBUF)
                g.e("v_mov_b32 v9, s63")
            if gi == 6:
                g.e("v_add_u32 v8, s61, v7")
                g.e("v_xad_u32 v4, v1, s62, v9")
                g.e("v_xad_u32 v5, v2, s62, v9")
                g.e("v_xad_u32 v6, v3, s62, v9")
            if gi == 7:
                g.e("s_waitcnt lgkmcnt(0)")
                if not o.no_bar: g.e("s_barrier")
            if gi in nxt and not o.no_read: rd(g, nxt[gi])
            if gi == 4 * J - 2:
                g.e(f"s_sub_u32 {cnt_reg}, {cnt_reg}, 1")
                g.e(f"s_cmp_lg_u32 {cnt_reg}, 0")
            gi += 1
    g.e(f"s_cbranch_scc1 {label}")

def bar(g):
    if not g.o.no_bar: g.e("s_barrier")

def w_issue(g, J):
    if g.o.no_dma: return
    g.e("s_mov_b32 s66, s64")
    g.e("s_mov_b32 m0, s65")
    for j in range(J):
        if j:
            g.e("s_add_u32 m0, m0, 2048")
            g.e("s_add_u32 s66, s66, 262144")
        else:
            g.e("s_nop 0")
        g.e("buffer_load_dwordx4 v1, s[24:27], s66 offen lds")

def w_next(g):
    g.e("s_add_u32 s64, s64, 8192")
    g.e("s_add_u32 s65, s65, %d" % WSLOT)
    g.e("s_cmp_ge_u32 s65, %d" % (g.WB + g.NS * WSLOT))
    g.e("s_cselect_b32 s67, %d, 0" % (g.NS * WSLOT))
    g.e("s_sub_u32 s65, s65, s67")

def x_issue(g):
    if g.o.no_dma: return
    g.e("s_mov_b32 m0, s65")
    g.e("s_nop 0")
    for k in range(16):
        g.e(f"buffer_load_dwordx4 v{10+k}, s[20:23], s64 offen lds")
        g.e("s_add_u32 m0, m0, 2048")
        g.e("s_nop 0")
    lab = f"L_x17_{len(g.l)}"
    g.e("s_cmp_lg_u32 s3, 6")
    g.e(f"s_cbranch_scc1 {lab}")
    g.e("buffer_load_dwordx4 v26, s[20:23], s64 offen lds")
    g.lab(lab)

def gen(o):
    g = G(o)
    NS = g.NS
    e = g.e
    hdr = f"""; Fused strided conv1d (implicit GEMM, bf16 MFMA) + per-channel GroupNorm over time + tanh-GELU.
; @launch grid=(256,1,1) block=(512,1,1) lds={g.LDS}
.amdgcn_target "amdgcn-amd-amdhsa--gfx950"
.text
.globl {KN}
.p2align 8
.type {KN},@function
{KN}:"""
    g.l.append(hdr)
    e("s_cmp_ge_u32 s2, 256")
    e("s_cbranch_scc1 L_end")
    e("s_load_dwordx16 s[4:19], s[0:1], 0")
    g.stamp_init()
    g.stamp(0)
    e("v_lshrrev_b32 v1, 6, v0")
    e("v_and_b32 v0, 63, v0")
    e("v_readfirstlane_b32 s3, v1")
    e("s_and_b32 s56, s2, 7")
    e("s_lshr_b32 s57, s2, 3")
    e("s_and_b32 s54, s57, 3")
    e("s_lshr_b32 s57, s57, 2")
    e("s_lshl_b32 s58, s56, 3")
    e("s_add_u32 s58, s58, s57")
    e("s_lshr_b32 s52, s58, 5")
    e("s_and_b32 s53, s58, 31")
    e("s_lshl_b32 s55, s53, 8")
    e("s_mul_i32 s56, s52, 8192000")
    e("s_lshl_b32 s57, s55, 10")
    e("s_add_u32 s56, s56, s57")
    e("s_lshl_b32 s59, s54, 7")
    e("s_waitcnt lgkmcnt(0)")
    e("s_add_u32 s20, s4, s56")
    e("s_addc_u32 s21, s5, 0")
    e(f"s_sub_u32 s22, {X_BYTES}, s56")
    e("s_mov_b32 s23, 0x20000")
    e("s_add_u32 s24, s6, s59")
    e("s_addc_u32 s25, s7, 0")
    e(f"s_sub_u32 s26, {W_BYTES}, s59")
    e("s_mov_b32 s27, 0x20000")
    e(f"s_mul_i32 s56, s52, {L}")
    e("s_add_u32 s56, s56, s55")
    e("s_lshl_b32 s56, s56, 9")
    e("s_add_u32 s28, s14, s56")
    e("s_addc_u32 s29, s15, 0")
    e(f"s_sub_u32 s30, {L}, s55")
    e("s_lshl_b32 s30, s30, 9")
    e("s_mov_b32 s31, 0x20000")
    e("s_mov_b32 s32, s18")
    e("s_mov_b32 s33, s19")
    e("s_mov_b32 s34, 0x200000")
    e("s_mov_b32 s35, 0x20000")
    e("s_mov_b32 s36, s16")
    e("s_mov_b32 s37, s17")
    e("s_mov_b32 s38, 256")
    e("s_mov_b32 s39, 0x20000")
    for k, p in ((40, 8), (44, 10), (48, 12)):
        e(f"s_mov_b32 s{k}, s{p}")
        e(f"s_mov_b32 s{k+1}, s{p+1}")
        e(f"s_mov_b32 s{k+2}, 512")
        e(f"s_mov_b32 s{k+3}, 0x20000")
    e("s_lshl_b32 s68, s52, 2")
    e("s_add_u32 s68, s68, s54")
    e("s_lshl_b32 s68, s68, 14")
    e("s_lshl_b32 s69, s53, 9")
    e("s_add_u32 s69, s69, s68")
    e("s_cmp_ge_u32 s3, 6")
    e("s_cbranch_scc1 L_xload")
    e("s_cmp_ge_u32 s3, 4")
    e("s_cbranch_scc1 L_wload")

    g.c("compute wave setup")
    e("s_lshr_b32 s56, s3, 1")
    e("s_and_b32 s57, s3, 1")
    e("v_and_b32 v10, 31, v0")
    e("v_lshrrev_b32 v11, 5, v0")
    e("s_lshl_b32 s58, s57, 6")
    e("s_add_u32 s58, s58, s59")
    e("v_lshl_add_u32 v12, v10, 1, s58")
    e("buffer_load_ushort v13, v12, s[40:43], 0 offen")
    e("s_lshl_b32 s58, s56, 5")
    for a in range(3):
        e(f"v_add_u32 v14, s58, v10")
        if a: e(f"v_add_u32 v14, {a}, v14")
        e("v_bfe_u32 v15, v14, 1, 3")
        e("v_xor_b32 v15, v15, v11")
        e("v_lshlrev_b32 v15, 4, v15")
        e(f"v_lshl_add_u32 v{1+a}, v14, 7, v15")
    e("v_and_b32 v14, 15, v0")
    e("v_lshrrev_b32 v15, 2, v14")
    e("v_lshl_add_u32 v15, v11, 3, v15")
    e("v_bfe_u32 v16, v0, 4, 1")
    e("v_lshlrev_b32 v16, 1, v16")
    e("v_bfe_u32 v17, v0, 1, 1")
    e("v_add_u32 v16, v16, v17")
    e("s_lshl_b32 s58, s57, 2")
    e("v_add_u32 v16, s58, v16")
    e("v_bfe_u32 v17, v0, 3, 1")
    e("v_lshlrev_b32 v17, 2, v17")
    e("v_xor_b32 v16, v16, v17")
    e("v_lshlrev_b32 v16, 4, v16")
    e("v_lshl_add_u32 v7, v15, 7, v16")
    e("v_and_b32 v17, 1, v0")
    e("v_lshl_add_u32 v7, v17, 3, v7")
    e("v_mov_b32 v4, v1")
    e("v_mov_b32 v5, v2")
    e("v_mov_b32 v6, v3")
    e(f"v_add_u32 v8, {g.WB}, v7")
    e("s_mov_b32 s60, 0")
    e(f"s_mov_b32 s61, {g.WB}")
    e("s_waitcnt vmcnt(0)")
    e("v_lshlrev_b32 v13, 16, v13")
    for r in range(64):
        e(f"v_mov_b32 v{ACC+r}, v13")
    if o.prio: e(f"s_setprio {o.prio}")
    bar(g)
    g.stamp(1)
    top, nxt, _ = sched(8)
    if not o.no_read:
        for gi in sorted(nxt): rd(g, nxt[gi])
    e("s_mov_b32 s64, 16")
    body(g, 8, "L_even", "s64")
    e("s_mov_b32 s64, 16")
    body(g, 7, "L_odd", "s64")
    e("s_waitcnt lgkmcnt(0)")
    g.stamp(2)
    g.c("per-channel partial sums")
    e("s_cmp_eq_u32 s53, 31")
    e("s_cbranch_scc1 L_stat_tail")
    e("s_nop 7")
    for k in range(4):
        r = ACC + 2 * k
        e(f"v_pk_mul_f32 v[{18+2*k}:{19+2*k}], v[{r}:{r+1}], v[{r}:{r+1}]")
    for k in range(4):
        r = ACC + 8 + 2 * k
        e(f"v_pk_add_f32 v[{10+2*k}:{11+2*k}], v[{r-8}:{r-7}], v[{r}:{r+1}]")
        e(f"v_pk_fma_f32 v[{18+2*k}:{19+2*k}], v[{r}:{r+1}], v[{r}:{r+1}], v[{18+2*k}:{19+2*k}]")
    for m in range(2, 8):
        for k in range(4):
            r = ACC + 8 * m + 2 * k
            e(f"v_pk_add_f32 v[{10+2*k}:{11+2*k}], v[{10+2*k}:{11+2*k}], v[{r}:{r+1}]")
            e(f"v_pk_fma_f32 v[{18+2*k}:{19+2*k}], v[{r}:{r+1}], v[{r}:{r+1}], v[{18+2*k}:{19+2*k}]")
    e("v_pk_add_f32 v[10:11], v[10:11], v[12:13]")
    e("v_pk_add_f32 v[18:19], v[18:19], v[20:21]")
    e("v_pk_add_f32 v[14:15], v[14:15], v[16:17]")
    e("v_pk_add_f32 v[22:23], v[22:23], v[24:25]")
    e("v_pk_add_f32 v[10:11], v[10:11], v[14:15]")
    e("v_pk_add_f32 v[18:19], v[18:19], v[22:23]")
    e("v_add_f32 v10, v10, v11")
    e("v_add_f32 v11, v18, v19")
    e("s_branch L_stat_join")
    g.lab("L_stat_tail")
    e("s_nop 7")
    e("v_mov_b32 v10, 0")
    e("v_mov_b32 v11, 0")
    e("s_cmp_ge_u32 s3, 2")
    e("s_cbranch_scc1 L_stat_join")
    def accum(r):
        e(f"v_add_f32 v10, v10, v{r}")
        e(f"v_fmac_f32 v11, v{r}, v{r}")
    for t in range(4):
        for r in range(6): accum(ACC + 16 * t + r)
    e("s_mov_b32 exec_lo, -1")
    e("s_mov_b32 exec_hi, 0")
    for t in range(4):
        for r in (6, 7): accum(ACC + 16 * t + r)
    e("s_mov_b32 exec_lo, 0")
    e("s_mov_b32 exec_hi, -1")
    accum(ACC + 6)
    e("s_mov_b64 exec, -1")
    g.lab("L_stat_join")
    e("s_lshr_b32 s56, s3, 1")
    e("s_and_b32 s57, s3, 1")
    e("s_lshl_b32 s58, s56, 9")
    e("s_lshl_b32 s62, s57, 8")
    e("s_add_u32 s58, s58, s62")
    e(f"s_add_u32 s58, s58, {g.MISC}")
    e("v_and_b32 v12, 31, v0")
    e("v_lshrrev_b32 v13, 5, v0")
    e("v_permlane32_swap_b32 v10, v11")
    e("v_lshl_add_u32 v14, v12, 3, s58")
    e("v_lshl_add_u32 v14, v13, 2, v14")
    e("v_add_f32 v10, v10, v11")
    e("ds_write_b32 v14, v10")
    e("s_mul_i32 s58, s56, %d" % (128 * 272))
    e("s_lshl_b32 s62, s57, 7")
    e("s_add_u32 s58, s58, s62")
    e("v_lshl_add_u32 v15, v12, 2, s58")
    e("v_mul_u32_u24 v13, %d, v13" % (16 * 272))
    e("v_add_u32 v15, v15, v13")
    e("s_waitcnt lgkmcnt(0)")
    e("s_barrier")
    for t in range(4):
        for r in range(16):
            row = t + 4 * (8 * (r >> 2) + (r & 3))
            e(f"ds_write_b32 v15, v{ACC+16*t+r} offset:{row*272}")
    e("s_waitcnt lgkmcnt(0)")
    e("s_barrier")
    g.stamp(3)
    e("s_branch L_final_rd")

    g.lab("L_xload")
    e("s_sub_u32 s56, s3, 6")
    e("v_lshrrev_b32 v1, 3, v0")
    e("v_and_b32 v2, 7, v0")
    e("s_lshl_b32 s57, s56, 3")
    e("v_add_u32 v1, s57, v1")
    e("s_movk_i32 s58, 993")
    for k in range(17):
        e(f"v_add_u32 v3, {16*k}, v1")
        e("v_mul_u32_u24 v4, s58, v3")
        e("v_lshrrev_b32 v4, 16, v4")
        e("v_mul_u32_u24 v5, 66, v4")
        e("v_sub_u32 v5, v3, v5")
        e("v_lshl_add_u32 v6, v5, 2, v4")
        e("v_bfe_u32 v5, v5, 1, 3")
        e("v_xor_b32 v5, v5, v2")
        e("v_lshlrev_b32 v5, 4, v5")
        e(f"v_lshl_add_u32 v{10+k}, v6, 10, v5")
    e("s_mov_b32 s64, 0")
    e("s_lshl_b32 s65, s56, 10")
    x_issue(g)
    e("s_mov_b32 s64, 128")
    e(f"s_add_u32 s65, s65, {XBUF}")
    x_issue(g)
    e("s_cmp_lg_u32 s3, 7")
    e("s_cbranch_scc1 L_noclean")
    e("v_lshl_add_u32 v3, v0, 3, s69")
    e("v_mov_b32 v4, -1")
    e("v_mov_b32 v5, -1")
    e("buffer_store_dwordx2 v[4:5], v3, s[32:35], 0 offen sc1")
    g.lab("L_noclean")
    e("s_waitcnt vmcnt(17)")
    bar(g)
    g.stamp(1)
    e("s_mov_b32 s60, 0")
    g.lab("L_xloop")
    e("s_cmp_eq_u32 s60, 0")
    e("s_cbranch_scc1 L_xskip")
    e("s_cmp_eq_u32 s60, 7")
    e("s_cbranch_scc1 L_xskip")
    e("s_add_u32 s61, s60, 1")
    e("s_and_b32 s64, s61, 3")
    e("s_lshl_b32 s64, s64, 7")
    e("s_lshr_b32 s62, s61, 2")
    e("s_lshl_b32 s62, s62, 9")
    e("s_add_u32 s64, s64, s62")
    e("s_bitcmp1_b32 s61, 0")
    e(f"s_cselect_b32 s65, {XBUF}, 0")
    e("s_lshl_b32 s62, s56, 10")
    e("s_add_u32 s65, s65, s62")
    x_issue(g)
    e("s_cmp_lg_u32 s60, 1")
    e("s_cbranch_scc1 L_xskip")
    e("s_cmp_lg_u32 s3, 7")
    e("s_cbranch_scc1 L_xskip")
    g.c("slot cleaned (vmcnt(0) passed before Bar_4): count it")
    e("s_mov_b64 exec, 1")
    e("v_mov_b32 v3, 0")
    e("v_mov_b32 v4, 1")
    e("buffer_atomic_add v4, v3, s[36:39], 0 offen sc1")
    e("s_mov_b64 exec, -1")
    g.lab("L_xskip")
    bar(g); bar(g); bar(g)
    e("s_waitcnt vmcnt(0)")
    bar(g)
    e("s_add_u32 s60, s60, 1")
    e("s_cmp_lt_u32 s60, 8")
    e("s_cbranch_scc1 L_xloop")
    g.stamp(2)
    e("s_barrier")
    e("s_barrier")
    e("s_branch L_final_rd")

    g.lab("L_wload")
    e("s_sub_u32 s56, s3, 4")
    e("v_lshrrev_b32 v2, 3, v0")
    e("v_and_b32 v3, 7, v0")
    e("v_bfe_u32 v4, v0, 4, 1")
    e("v_lshlrev_b32 v4, 2, v4")
    e("v_xor_b32 v3, v3, v4")
    e("v_lshlrev_b32 v3, 4, v3")
    e("v_lshl_add_u32 v1, v2, 9, v3")
    e("s_lshl_b32 s57, s56, 12")
    e("v_add_u32 v1, s57, v1")
    e("s_mov_b32 s64, 0")
    e("s_lshl_b32 s65, s56, 10")
    e(f"s_add_u32 s65, s65, {g.WB}")
    e(f"s_mov_b32 s60, {NS-1}")
    g.lab("L_wpro")
    w_issue(g, 8); w_next(g)
    e("s_sub_u32 s60, s60, 1")
    e("s_cmp_lg_u32 s60, 0")
    e("s_cbranch_scc1 L_wpro")
    e(f"s_waitcnt vmcnt({8*(NS-2)})")
    bar(g)
    g.stamp(1)
    e(f"s_mov_b32 s60, {17-NS}")
    g.lab("L_wA")
    w_issue(g, 8); w_next(g)
    e(f"s_waitcnt vmcnt({8*(NS-2)})")
    bar(g)
    e("s_sub_u32 s60, s60, 1")
    e("s_cmp_lg_u32 s60, 0")
    e("s_cbranch_scc1 L_wA")
    e("s_mov_b32 s64, 131072")
    e("s_mov_b32 s60, 16")
    g.lab("L_wB")
    w_issue(g, 7); w_next(g)
    e(f"s_waitcnt vmcnt({7*(NS-2)})")
    bar(g)
    e("s_sub_u32 s60, s60, 1")
    e("s_cmp_lg_u32 s60, 0")
    e("s_cbranch_scc1 L_wB")
    for k in range(33 - NS, 32):
        n = max(0, 31 - (k + 1)) * 7
        if k < 31: e(f"s_waitcnt vmcnt({n})")
        if k == 30:
            e("v_and_b32 v2, 31, v0")
            e("v_lshrrev_b32 v3, 5, v0")
            e("v_lshl_add_u32 v2, v2, 1, v3")
            e("v_lshl_add_u32 v3, v2, 1, s59")
            e("buffer_load_ushort v4, v3, s[44:47], 0 offen")
            e("buffer_load_ushort v5, v3, s[48:51], 0 offen")
            e("v_mov_b32 v6, 0")
            e("buffer_load_dword v7, v6, s[36:39], 0 offen sc1")
        bar(g)
    g.stamp(2)
    e("s_cmp_lg_u32 s3, 4")
    e("s_cbranch_scc1 L_w5")
    e("s_mov_b32 s60, 0")
    g.lab("L_chk")
    e("s_waitcnt vmcnt(0)")
    e("v_readfirstlane_b32 s61, v7")
    e("s_cmp_ge_u32 s61, 256")
    e("s_cbranch_scc1 L_chk_ok")
    e("s_add_u32 s60, s60, 1")
    e("s_cmp_ge_u32 s60, 0x100000")
    e("s_cbranch_scc1 L_chk_ok")
    e("s_sleep 2")
    e("buffer_load_dword v7, v6, s[36:39], 0 offen sc1")
    e("s_branch L_chk")
    g.lab("L_chk_ok")
    e(f"v_lshlrev_b32 v8, 3, v0")
    e(f"v_add_u32 v9, {g.MISC}, v8")
    e("v_add_u32 v8, s69, v8")
    e("v_lshl_add_u32 v6, v0, 4, s68")
    e("s_movk_i32 s61, 0x1000")
    e("s_movk_i32 s62, 0x2000")
    e("s_movk_i32 s63, 0x3000")
    e("v_lshlrev_b32 v4, 16, v4")
    e("v_lshlrev_b32 v5, 16, v5")
    e("s_barrier")
    e("ds_read_b64 v[10:11], v9")
    e("ds_read_b64 v[12:13], v9 offset:512")
    e("s_waitcnt lgkmcnt(0)")
    e("v_add_f32 v10, v10, v12")
    e("v_add_f32 v11, v11, v13")
    e("v_and_b32 v11, 0x7fffffff, v11")
    e(f"buffer_store_dwordx2 v[10:11], v8, s[32:35], 0 offen {o.st_flags}")
    g.stamp(3)
    GR = 128
    def gather_loads():
        for u in range(16):
            so = ["0", "s61", "s62", "s63"][u >> 2]
            e(f"buffer_load_dwordx4 v[{GR+4*u}:{GR+4*u+3}], v6, s[32:35], {so} offen offset:{(u&3)*1024} {o.ld_flags}")
    gather_loads()
    e("s_barrier")
    e("s_mov_b32 s60, 0")
    g.lab("L_poll")
    e("s_waitcnt vmcnt(0)")
    e(f"v_or_b32 v14, v{GR+1}, v{GR+3}")
    for u in range(1, 16):
        e(f"v_or3_b32 v14, v14, v{GR+4*u+1}, v{GR+4*u+3}")
    e("v_cmp_gt_i32 vcc, 0, v14")
    e("s_cbranch_vccz L_poll_ok")
    e("s_add_u32 s60, s60, 1")
    e("s_cmp_ge_u32 s60, 0x40000")
    e("s_cbranch_scc1 L_poll_ok")
    gather_loads()
    e("s_branch L_poll")
    g.lab("L_poll_ok")
    g.stamp(4)
    for u in range(1, 16):
        d = GR + 4 * (u & 1)
        if u == 1: continue
        e(f"v_pk_add_f32 v[{d}:{d+1}], v[{d}:{d+1}], v[{GR+4*u}:{GR+4*u+1}]")
        e(f"v_pk_add_f32 v[{d+2}:{d+3}], v[{d+2}:{d+3}], v[{GR+4*u+2}:{GR+4*u+3}]")
    e(f"v_pk_add_f32 v[{GR}:{GR+1}], v[{GR}:{GR+1}], v[{GR+4}:{GR+5}]")
    e(f"v_pk_add_f32 v[{GR+2}:{GR+3}], v[{GR+2}:{GR+3}], v[{GR+6}:{GR+7}]")
    e("s_mov_b32 s61, 0x%08x" % f2u(1.0 / L))
    e("s_nop 0")
    e(f"v_permlane32_swap_b32 v{GR}, v{GR+2}")
    e(f"v_permlane32_swap_b32 v{GR+1}, v{GR+3}")
    e(f"v_add_f32 v10, v{GR}, v{GR+2}")
    e(f"v_add_f32 v11, v{GR+1}, v{GR+3}")
    e("v_mul_f32 v10, s61, v10")
    e("v_mul_f32 v11, s61, v11")
    e("v_fma_f32 v11, -v10, v10, v11")
    e("v_max_f32 v11, 0, v11")
    e("v_add_f32 v11, 0x%08x, v11" % f2u(1e-5))
    e("v_rsq_f32 v11, v11")
    e(f"v_lshlrev_b32 v12, 2, v2")
    e(f"v_add_u32 v12, {g.MISC + 1024}, v12")
    e("v_mul_f32 v11, v4, v11")
    e("v_fma_f32 v10, -v10, v11, v5")
    e("ds_write_b32 v12, v11")
    e("ds_write_b32 v12, v10 offset:256")
    e("s_branch L_final_rd")
    g.lab("L_w5")
    e("s_barrier")
    e("s_barrier")

    g.lab("L_final_rd")
    Y = 64
    e("v_lshrrev_b32 v20, 3, v0")
    e("s_lshl_b32 s56, s3, 5")
    e("v_add_u32 v20, s56, v20")
    e("v_and_b32 v21, 7, v0")
    e("v_mul_u32_u24 v22, 272, v20")
    e("v_lshl_add_u32 v22, v21, 5, v22")
    for rg in range(4):
        e(f"ds_read_b128 v[{Y+8*rg}:{Y+8*rg+3}], v22 offset:{rg*8*272}")
        e(f"ds_read_b128 v[{Y+8*rg+4}:{Y+8*rg+7}], v22 offset:{rg*8*272+16}")
    e("v_lshlrev_b32 v23, 9, v20")
    e("v_lshl_add_u32 v23, v21, 4, v23")
    e("v_add_u32 v23, s59, v23")
    e(f"v_lshlrev_b32 v24, 5, v21")
    e(f"v_add_u32 v24, {g.MISC + 1024}, v24")
    K1 = -2.0 * 0.7978845608028654 * 1.4426950408889634
    K2 = K1 * 0.044715
    e("s_mov_b32 s60, 0x%08x" % f2u(K1)); e("s_mov_b32 s61, 0x%08x" % f2u(K1))
    e("v_mov_b32 v26, 0x%08x" % f2u(K2)); e("v_mov_b32 v27, 0x%08x" % f2u(K2))
    e("s_waitcnt lgkmcnt(0)")
    e("s_barrier")
    g.stamp(5)
    e("ds_read_b128 v[32:35], v24")
    e("ds_read_b128 v[36:39], v24 offset:16")
    e("ds_read_b128 v[40:43], v24 offset:256")
    e("ds_read_b128 v[44:47], v24 offset:272")
    e("s_waitcnt lgkmcnt(0)")
    for rg in range(4):
        y = Y + 8 * rg
        P = 96 + 8 * rg
        for k in range(4):
            e(f"v_pk_fma_f32 v[{y+2*k}:{y+2*k+1}], v[{y+2*k}:{y+2*k+1}], v[{32+2*k}:{33+2*k}], v[{40+2*k}:{41+2*k}]")
        for k in range(4):
            e(f"v_pk_mul_f32 v[{P+2*k}:{P+2*k+1}], v[{y+2*k}:{y+2*k+1}], v[{y+2*k}:{y+2*k+1}]")
        for k in range(4):
            e(f"v_pk_fma_f32 v[{P+2*k}:{P+2*k+1}], v[{P+2*k}:{P+2*k+1}], v[26:27], s[60:61]")
        for k in range(4):
            e(f"v_pk_mul_f32 v[{P+2*k}:{P+2*k+1}], v[{P+2*k}:{P+2*k+1}], v[{y+2*k}:{y+2*k+1}]")
        for k in range(8):
            e(f"v_exp_f32 v{P+k}, v{P+k}")
        for k in range(4):
            e(f"v_pk_add_f32 v[{P+2*k}:{P+2*k+1}], v[{P+2*k}:{P+2*k+1}], 1.0 op_sel_hi:[1,0]")
        for k in range(8):
            e(f"v_rcp_f32 v{P+k}, v{P+k}")
        for k in range(4):
            e(f"v_pk_mul_f32 v[{y+2*k}:{y+2*k+1}], v[{y+2*k}:{y+2*k+1}], v[{P+2*k}:{P+2*k+1}]")
        for k in range(4):
            e(f"v_cvt_pk_bf16_f32 v{48+4*rg+k}, v{y+2*k}, v{y+2*k+1}")
        e(f"buffer_store_dwordx4 v[{48+4*rg}:{51+4*rg}], v23, s[28:31], 0 offen")
        if rg < 3: e("v_add_u32 v23, 4096, v23")
    g.stamp(6)
    if o.stamps:
        e("s_waitcnt vmcnt(0)")
        g.stamp(7)
    g.stamp_flush()
    g.lab("L_end")
    e("s_endpgm")
    g.l.append(f""".section .rodata,"a"
.p2align 6
.amdhsa_kernel {KN}
  .amdhsa_next_free_vgpr 208
  .amdhsa_next_free_sgpr 102
  .amdhsa_accum_offset 208
  .amdhsa_group_segment_fixed_size 0
  .amdhsa_kernarg_size 64
  .amdhsa_user_sgpr_count 2
  .amdhsa_user_sgpr_kernarg_segment_ptr 1
  .amdhsa_system_sgpr_workgroup_id_x 1
.end_amdhsa_kernel""")
    return "\n".join(g.l) + "\n"

import struct
def f2u(x): return struct.unpack("<I", struct.pack("<f", x))[0]

if __name__ == "__main__":
    ap = argparse.ArgumentParser()
    ap.add_argument("-o", default="k.s")
    ap.add_argument("--ns", type=int, default=5)
    ap.add_argument("--stamps", action="store_true")
    ap.add_argument("--dbgstamps", action="store_true")
    ap.add_argument("--no-mfma", action="store_true")
    ap.add_argument("--no-read", action="store_true")
    ap.add_argument("--no-dma", action="store_true")
    ap.add_argument("--no-bar", action="store_true")
    ap.add_argument("--prio", type=int, default=0)
    ap.add_argument("--st-flags", default="sc1")
    ap.add_argument("--ld-flags", default="sc1")
    o = ap.parse_args()
    open(o.o, "w").write(gen(o))
```

```python
import argparse, struct
KN = "standalone__self_sup_conv_stem_hubert__speech_kernel"
X_BYTES = 2 * 16000 * 512
W_BYTES = 15 * 256 * 512
L = 7993
TS = 250
XBUF = 257 * 128
OB = 129 * 128
DB = 2 * XBUF
WB = DB + 131 * 128
MISC = WB + 65536
def clsE(c): return (16 * c + (c > 0)) * 128
def clsO(c): return OB + 16 * c * 128
def clsD(c): return 16 * c * 128
SIG = [1, 3, 9, 11, 4, 12, 10, 14, 5, 7, 13, 15, 0, 2, 8, 6]
STAB = sum(v << (4 * i) for i, v in enumerate(SIG))
LDS = MISC + 512
FTAB = 0x7762574435221100
YP = 272
def f2u(x): return struct.unpack("<I", struct.pack("<f", x))[0]
def ftab(i): return (FTAB >> (4 * (i & 15))) & 7

AU, AV, AP = 16, 48, 80
FR, BE, BO, CR, TM, PFD = 112, 188, 204, 220, 236, 244
SLOT = {"E": [0, 1, 2, 15, 16, 17, 18, 7, 8, 9, 10], "O": [0, 1, 2, 3, 4, 5, 6, 11, 12, 13, 14], "D": list(range(11))}
G2A = {"U": "E", "V": "O", "P": "D"}
def freg(arr, u): return FR + 4 * SLOT[arr][u]
def rng(b, n=4): return f"v[{b}:{b+n-1}]"

class G:
    def __init__(self, o):
        self.o = o; self.l = []; self.inhelper = False
    def e(self, s): self.l.append("    " + s)
    def lab(self, s): self.l.append(s + ":")
    def c(self, s): self.l.append("    ; " + s)
    def bar(self):
        self.e("s_barrier")
    def pstamp(self, p):
        if self.o.pstamps: self.stamp(p, True)
    def stamp(self, p, force=False):
        if not self.o.stamps or (self.o.hstamps and self.inhelper): return
        if self.o.pstamps and p > 2 and not force: return
        b = 70 + 4 * p
        self.e(f"s_memrealtime s[{b}:{b+1}]"); self.e(f"s_memtime s[{b+2}:{b+3}]"); self.e("s_waitcnt lgkmcnt(0)")
    def stamp_init(self):
        if not self.o.stamps: return
        for r in range(70, 102, 2): self.e(f"s_mov_b64 s[{r}:{r+1}], 0")
    def stamp_flush(self):
        if not self.o.stamps: return
        e = self.e
        e("s_waitcnt vmcnt(0) lgkmcnt(0)")
        e("s_lshl_b32 s56, s2, 3"); e("s_add_u32 s56, s56, s3"); e("s_lshl_b32 s56, s56, 7"); e("s_add_u32 s56, s56, 0x100000")
        e("v_mov_b32 v10, s56"); e("s_mov_b64 exec, 1")
        for p in range(8):
            b = 70 + 4 * p
            for k in range(4): e(f"v_mov_b32 v{12+k}, s{b+k}")
            e(f"buffer_store_dwordx4 v[12:15], v10, s[32:35], 0 offen offset:{16*p}"); e("s_waitcnt vmcnt(0)")

def umajor(K): return [(u - s_, s_, u) for u in range(7 + K) for s_ in range(min(u, 7), -1, -1) if 0 <= u - s_ < K]

def sub_ops(dst, a, b, t):
    return [(f"v_lshlrev_b32 v{t}, 16, v{a}", [a], [t]), (f"v_lshlrev_b32 v{t+2}, 16, v{b}", [b], [t + 2]),
            (f"v_and_b32 v{t+1}, s58, v{a}", [a], [t + 1]), (f"v_and_b32 v{t+3}, s58, v{b}", [b], [t + 3]),
            (f"v_sub_f32 v{t}, v{t}, v{t+2}", [t, t + 2], [t]), (f"v_sub_f32 v{t+1}, v{t+1}, v{t+3}", [t + 1, t + 3], [t + 1]),
            (f"v_cvt_pk_bf16_f32 v{dst}, v{t}, v{t+1}", [t, t + 1], [dst])]
def chain(units):
    out = []
    for u in units:
        if out and len(u) == 7:
            last = out.pop(); out += [u[0], last] + u[1:]
        else: out += u
    return out
def cunit(k, r): return sub_ops(CR + 4 * k + r, BE + 4 * k + r, BO + 4 * k + r, TM + 4 * (r & 1))

class Period:
    def __init__(self, p, cc, o):
        self.p = p
        KV = 4 - p
        N = self.N = 96 - 8 * p
        P0 = self.P0 = 64 - 8 * p
        self.alpha = o.alpha; self.gamma = P0 + o.gammaoff
        self.delta = (o.delta - (o.dshift if p else 0)) if cc == 0 else -1
        mf = []
        for k, s, u in umajor(4): mf.append(("U", k, s, u))
        for k, s, u in umajor(KV): mf.append(("V", k, s, u))
        for k in range(4):
            for s in range(8): mf.append(("P", k, s, s + k))
        assert len(mf) == N
        self.mf = mf
        first = {}; last = {}
        for i, (g, k, s, u) in enumerate(mf):
            for key in ((g, "F", u), (g, "B", k)):
                first.setdefault(key, i); last[key] = i
        c0s = self.gamma + 4 + o.minlat
        npre = o.npre
        if p == 0: win = {1: (10, 60), 2: (28, 70), 3: (44, N - 12)}
        else: win = {1: (10, 60), 2: (30, 70), 3: (44, N - 12)}
        valu = []
        valu.append((0, 30, chain([cunit(0, r) for r in range(npre, 4)]), 0))
        for k in (1, 2, 3):
            if p == 1 and k == 3:
                ops = [(f"v_mov_b32 v{CR+12+r}, v{BE+12+r}", [BE + 12 + r], [CR + 12 + r]) for r in range(4)]
            else:
                ops = chain([cunit(k, r) for r in range(4)])
            valu.append((win[k][0], win[k][1], ops, 0))
        valu.append((c0s, N, chain([cunit(0, r) for r in range(npre)]), 1))
        self.npre = npre
        ld = []
        lim = self.alpha - o.amargin
        lim2 = self.gamma - o.amargin
        def free_after(arr, u, limit):
            ts = [i for i, (g_, k_, s_, u_) in enumerate(mf) if i < limit and SLOT[G2A[g_]][u_] == SLOT[arr][u]]
            return max(ts) if ts else 0
        npe = o.npe
        for u in range(npe, 11): ld.append((("E", u), 0, 0, first[("U", "F", u)], lim2))
        for k in range(2, KV):
            for h in (0, 1): ld.append((("Bo", k, h), 0, 0, min(win[k][0], first[("V", "B", k)]), lim))
        for u in range(7 + KV):
            ld.append((("O", u), 0, free_after("O", u, 32), first[("V", "F", u)], self.alpha if cc == 0 else lim2))
        for u in range(11):
            ld.append((("D", u), 0, max(self.delta, 1, free_after("D", u, P0)), first[("P", "F", u)], N - 1))
        b = self.gamma
        for h in (0, 1):
            ld.append((("Be", 0, h), 1, b, c0s, N - 1)); ld.append((("Bo", 0, h), 1, b, c0s, N - 1))
            ld.append((("Be", 1, h), 1, b, N + first[("U", "B", 1)], N - 1))
            ld.append((("Bo", 1, h), 1, b, N + 10, N - 1))
            ld.append((("Be", 2, h), 1, max(b, win[2][1]), N + first[("U", "B", 2)], N - 1))
            ld.append((("Be", 3, h), 1, max(b, win[3][1]), N + first[("U", "B", 3)], N - 1))
        for u in range(npe): ld.append((("E", u), 1, max(b, free_after("E", u, N)), N + first[("U", "F", u)], N - 1))
        slots = [[] for _ in range(N)]
        pend = list(ld)
        def dl(x): return min(x[3], x[4] + o.minlat)
        for t in range(N):
            av = [x for x in pend if x[2] <= t and dl(x) - t <= o.lead and not (self.alpha < t < self.delta)]
            if not av: continue
            x = min(av, key=lambda x: (dl(x), ld.index(x)))
            pend.remove(x)
            assert t <= x[4], (p, x, t)
            assert x[3] - t >= o.minlat, (p, x, t)
            slots[t].append(("ld", x[0], x[1]))
        assert not pend, pend
        self.slots = slots
        self.valu = valu
        self.pre = [it for t in range(N) for it in slots[t] if it[2] == 1]

def ld_dst(name):
    if name[0] in "EOD": return list(range(freg(*name), freg(*name) + 4))
    base = BE if name[0] == "Be" else BO
    r = base + 4 * name[1] + 2 * name[2]
    return [r, r + 1]
def ld_text(name, cc):
    if name[0] in "EOD":
        u = name[1]; a = u >> 3
        if name[0] == "D": return f"ds_read_b128 {rng(freg(*name))}, v{5 + a + 2*cc} offset:{clsD(u & 7)}"
        return f"ds_read_b128 {rng(freg(*name))}, v{1 + a + 2*cc} offset:{(clsE if name[0] == 'E' else clsO)(u & 7)}"
    d = ld_dst(name)
    j = 2 * name[1] + (name[0] == "Bo")
    return f"ds_read_b64_tr_b16 v[{d[0]}:{d[1]}], v9 offset:{cc * 32768 + j * 4096 + name[2] * 512}"

def build_bodies(o):
    per = {(p, cc): Period(p, cc, o) for p in (0, 1) for cc in (0, 1)}
    bodies = {}
    for p in (0, 1):
        body = []
        for cc in (0, 1):
            P = per[(p, cc)]
            vs = [[] for _ in range(P.N)]
            extra = [[] for _ in range(P.N)]
            if o.cdummy:
                txt = {1: f"ds_write_b128 v10, v[{PFD}:{PFD+3}]", 2: f"ds_write_b64 v10, v[{PFD}:{PFD+1}]", 3: f"ds_write_b32 v10, v{PFD}",
                       4: f"ds_write_b64 v10, v[{PFD}:{PFD+1}]", 5: f"ds_write_b32 v10, v{PFD}", 6: f"ds_write_addtid_b32 v{PFD}"}[o.cdummy]
                ts = {4: (10, 12, 50, 52), 5: (10, 11, 12, 13, 50, 51, 52, 53), 6: (10, 11, 12, 13, 50, 51, 52, 53)}.get(o.cdummy, (10, 50))
                for t in ts: extra[t].append(dict(k="l", name=("Z", 0), rel=0, cc=cc, wr=[], t=txt + f" offset:{1024*(t&3)}"))
            if cc == 1:
                extra[P.gamma - 9].append(dict(k="x", t="s_sub_u32 s62, 0, s62"))
                for q in range(4): extra[P.gamma - 8 + 2 * q].append(dict(k="x", t=f"v_add_u32 v{1+q}, s62, v{1+q}"))
                extra[P.N - 3].append(dict(k="x", t="s_sub_u32 s64, s64, 1"))
                extra[P.N - 2].append(dict(k="x", t="s_cmp_lg_u32 s64, 0"))
            stream = [(a, b, op, rel) for (a, b, ops, rel) in P.valu for op in ops]
            tend = P.N - o.vmargin
            pos = 0
            for t in range(P.N):
                cap = o.cap - len(P.slots[t]) - len(extra[t]) - (1 if t in (P.alpha, P.gamma, P.delta) else 0)
                cap = min(cap, 2)
                want = -(-(t + 1) * len(stream) // tend)
                while cap > 0 and pos < min(want, len(stream)) and stream[pos][0] <= t:
                    a, b, (tx, rd, wr), rel = stream[pos]
                    assert t < b, ("valu late", p, t, stream[pos])
                    vs[t].append(dict(k="v", t=tx, rd=rd, wr=wr, rel=rel)); pos += 1; cap -= 1
            assert pos == len(stream), ("valu overflow", p, pos)
            for t, (g, k, s, u) in enumerate(P.mf):
                acc = {"U": AU, "V": AV, "P": AP}[g] + 4 * s
                bop = {"U": BE, "V": BO, "P": CR}[g] + 4 * k
                body.append(dict(k="m", t=f"v_mfma_f32_16x16x32_bf16 {rng(acc)}, {rng(freg(G2A[g], u))}, {rng(bop)}, {rng(acc)}",
                                 g=g, kk=k, u=u, cc=cc, slot=t, rd=list(range(freg(G2A[g], u), freg(G2A[g], u) + 4)) + list(range(bop, bop + 4))))
                if t == P.delta: body.append(dict(k="b", which="d", cc=cc, t="s_barrier"))
                if t == P.gamma: body.append(dict(k="b", which="g", cc=cc, t="s_barrier"))
                for it in P.slots[t]:
                    body.append(dict(k="l", name=it[1], rel=it[2], cc=cc, t=ld_text(it[1], cc ^ it[2]), wr=ld_dst(it[1])))
                if t == P.alpha: body.append(dict(k="b", which="a", cc=cc, t="s_barrier"))
                body += vs[t]; body += extra[t]
        bodies[p] = body
    pro = [dict(k="l", name=it[1], rel=1, cc=1, t=ld_text(it[1], 0), wr=ld_dst(it[1])) for it in per[(0, 1)].pre]
    pro += [dict(k="v", t=tx, rd=rd, wr=wr, rel=1) for tx, rd, wr in chain([cunit(0, r) for r in range(o.npre)])]
    pro.append(dict(k="x", t="s_nop 0", wait=0))
    def run(final):
        changed = False
        issued = []
        mark = -1
        tag = {}
        now = 0
        seq = [(pro, -1)] + [(bodies[st >> 2], st) for st in range(8)]
        for code, st in seq:
            for ins in code:
                i = 2 * st + ins.get("cc", 0) if st >= 0 else -1
                if ins["k"] == "v" and st >= 0: i = cur
                if ins["k"] == "m": cur = i; now += 1
                need = -1
                if ins["k"] in "mv":
                    for r in ins["rd"]:
                        if r in tag: need = max(need, tag[r][1])
                if ins["k"] == "b":
                    kinds = {"a": ("Be", "Bo", "D"), "g": ("E", "O"), "d": ()}[ins["which"]]
                    for j, (x, sc, _) in enumerate(issued):
                        if x["name"][0] in kinds and sc <= (i if x["name"][0] != "D" else i - 1): need = max(need, j)
                if "wait" in ins: mark = max(mark, len(issued) - 1 - ins["wait"])
                if need > mark:
                    assert not final
                    n = len(issued) - 1 - need
                    recent = sum(1 for (_, _, tt) in issued if tt > now - o.waitahead)
                    n = min(n, recent, 15)
                    ins["wait"] = min(n, ins.get("wait", 99)); changed = True
                    mark = max(mark, len(issued) - 1 - ins["wait"])
                if ins["k"] == "l":
                    sc = i + ins["rel"]
                    issued.append((ins, sc, now))
                    for q, r in enumerate(ins["wr"]): tag[r] = ((ins["name"], sc, q), len(issued) - 1)
                elif ins["k"] == "v":
                    sc = i + ins["rel"]
                    for r in ins["rd"]:
                        if BE <= r < BO + 16:
                            nm, s2, q = tag[r][0]
                            base = BE if r < BO else BO
                            assert nm == (("Be" if r < BO else "Bo"), (r - base) >> 2, ((r - base) >> 1) & 1) and s2 == sc, (ins, tag[r], sc)
                    for r in ins["wr"]: tag[r] = (("val", sc, now), -1)
                elif ins["k"] == "m":
                    arr = {"U": "E", "V": "O", "P": "D"}[ins["g"]]
                    for q, r in enumerate(ins["rd"][:4]): assert tag[r][0] == ((arr, ins["u"]), i, q), (ins, tag[r], i)
                    for q, r in enumerate(ins["rd"][4:]):
                        if ins["g"] == "P": assert tag[r][0][0] == "val" and tag[r][0][1] == i and tag[r][0][2] < now - 1, (ins, tag[r])
                        else: assert tag[r][0][:2] == ((("Be" if ins["g"] == "U" else "Bo"), ins["kk"], q >> 1), i), (ins, tag[r], i)
        return changed
    while run(False): pass
    run(True)
    return pro, bodies

def emit(g, code):
    o = g.o
    for ins in code:
        if "wait" in ins and not o.no_read: g.e(f"s_waitcnt lgkmcnt({ins['wait']})")
        if ins["k"] == "m" and o.no_mfma: continue
        if ins["k"] == "l" and o.no_read: continue
        if ins["k"] == "v" and o.no_valu: continue
        g.e(ins["t"].replace("s[60-PF]", "s[96:99]" if False else "s[44:47]"))

HA, HC, HD, HS = 32, 64, 96, 24
XV, TO, TE, WD = 2, 10, 12, 16
class Stream:
    def __init__(self): self.l = []
    def e(self, t, **k): self.l.append(dict(t=t, **k))
def w_one(S, j, slot, tag):
    if j == 0:
        S.e(f"s_add_u32 m0, s59, {slot*32768}"); S.e("s_mov_b32 s57, s64")
    else:
        S.e(f"s_add_u32 m0, s59, {slot*32768+j*4096}"); S.e("s_add_u32 s57, s57, 262144")
    S.e(f"buffer_load_dwordx4 v1, {'s[40:43]' if j == 7 else 's[24:27]'}, s57 offen lds", vm=tag)
    if j == 7:
        for t in ("s_add_u32 s60, s60, 1", "s_add_u32 s64, s64, 16384", "s_cmp_eq_u32 s60, 8", "s_cselect_b32 s42, 0, s42",
                  "s_cmp_eq_u32 s60, 16", "s_cselect_b32 s26, 0, s26"): S.e(t)
def x_one(S, n, buf, tag):
    if n < 8:
        S.e(f"s_add_u32 m0, s{66 + (n >= 2)}, {buf*XBUF + n*1024}"); S.e("s_nop 0")
        S.e(f"buffer_load_dwordx4 v{XV+n}, s[20:23], s65 offen lds", vm=tag)
    else:
        S.e(f"s_mov_b32 m0, {buf*XBUF + 16*128}"); S.e("s_mov_b64 exec, 0xff")
        S.e("buffer_load_dwordx4 v18, s[20:23], s65 offen lds", vm=tag); S.e("s_mov_b64 exec, -1")
def d_reads(S, t, buf):
    cl, half = t & 1, t >> 1
    for mf in range(2):
        r = HA + 8 * t + 4 * mf
        S.e(f"ds_read_b64_tr_b16 v[{r}:{r+1}], v{TO+half} offset:{buf*XBUF + cl*2048 + 8*mf}", ds=1)
        S.e(f"ds_read_b64_tr_b16 v[{r+2}:{r+3}], v{TE+cl+2*half} offset:{buf*XBUF + 8*mf}", ds=1)
def d_mfma(S, o):
    S.e("s_waitcnt lgkmcnt(0)", ds=1)
    if o.mprio: S.e(f"s_setprio {o.mprio}")
    for q in range(8): S.e(f"v_mfma_f32_16x16x32_bf16 {rng(HC+4*q)}, {rng(HA+4*q)}, {rng(HS)}, 0", hv=1)
    if o.mprio: S.e(f"s_setprio {o.hprio}")
def d_cvt(S):
    for q in range(16): S.e(f"v_cvt_pk_bf16_f32 v{HD+q}, v{HC+2*q}, v{HC+2*q+1}", hv=1)
def d_write(S, t): S.e(f"ds_write_b128 v{WD+(t>>1)}, {rng(HD+4*t)} offset:{(t&1)*2048}", ds=1)
def solve_vm(parts):
    for S, env in parts:
        for ins in S.l:
            if "need" in ins: ins.setdefault("n", 63)
    issued = []
    for S, env in parts:
        for ins in S.l:
            if "vm" in ins: issued.append((ins["vm"][0], env[ins["vm"][0]] + ins["vm"][1]))
            if "need" in ins:
                for nm, off in ins["need"]:
                    key = (nm, env[nm] + off)
                    idx = [j for j, k in enumerate(issued) if k == key]
                    if idx: ins["n"] = min(ins["n"], len(issued) - 1 - idx[-1])
def emit_stream(g, S):
    o = g.o
    for ins in S.l:
        if "need" in ins:
            w = []
            if ins["n"] < 63 and not o.no_dma: w.append(f"vmcnt({ins['n']})")
            if ins.get("lg") and not o.no_hwait: w.append("lgkmcnt(0)")
            if w: g.e("s_waitcnt " + " ".join(w))
            continue
        if "vm" in ins and o.no_dma and not ins.get("keep"): continue
        if ins.get("hv") and o.no_hvalu: continue
        if ins.get("ds") and o.no_hwr: continue
        if o.no_hrd and ins["t"].startswith("ds_read"): continue
        if o.no_hw and ins["t"].startswith("ds_write"): continue
        if ins["t"].endswith(":"): g.l.append(ins["t"])
        else: g.e(ins["t"])
def w_issue(g):
    S = Stream()
    for j in range(8): w_one(S, j, 0, ("W", 0))
    S.l = S.l[:-6]
    emit_stream(g, S)

def w_voff(g, hreg):
    e = g.e
    e("v_lshrrev_b32 v15, 3, v0")
    e(f"s_lshl_b32 s56, {hreg}, 3")
    e("v_add_u32 v1, s56, v15")
    e("v_bfe_u32 v15, v0, 4, 1")
    e(f"s_and_b32 s56, {hreg}, 1")
    e("s_lshl_b32 s56, s56, 1")
    e("v_or_b32 v15, s56, v15")
    e("v_lshlrev_b32 v15, 1, v15")
    e("v_and_b32 v14, 7, v0")
    e("v_xor_b32 v15, v15, v14")
    e("v_lshlrev_b32 v15, 4, v15")
    e("v_lshl_add_u32 v1, v1, 9, v15")

def gen(o):
    global WFIRST
    WFIRST = o.wfirst
    g = G(o); e = g.e
    pro, bodies = build_bodies(o)
    g.l.append(f"""; Fused strided conv1d + per-channel GroupNorm over time + tanh-GELU, one workgroup per CU.
; is evaluated with the 2-parallel fast-FIR identity (U = E*Be, V = O*Bo, P = (O-E')*(Be-Bo);
; @launch grid=(256,1,1) block=(512,1,1) lds={LDS}
.amdgcn_target "amdgcn-amd-amdhsa--gfx950"
.text
.globl {KN}
.p2align 8
.type {KN},@function
{KN}:""")
    e("s_cmp_ge_u32 s2, 256")
    e("s_cbranch_scc1 L_end")
    e("s_load_dwordx16 s[4:19], s[0:1], 0")
    g.stamp_init(); g.stamp(0)
    e("v_lshrrev_b32 v1, 6, v0")
    e("v_and_b32 v0, 63, v0")
    e("v_readfirstlane_b32 s3, v1")
    e("s_and_b32 s56, s2, 7")
    e("s_lshr_b32 s57, s2, 3")
    e("s_and_b32 s54, s57, 3")
    e("s_lshr_b32 s57, s57, 2")
    e("s_lshl_b32 s58, s56, 3")
    e("s_add_u32 s58, s58, s57")
    e("s_lshr_b32 s52, s58, 5")
    e("s_and_b32 s53, s58, 31")
    e(f"s_mul_i32 s55, s53, {TS}")
    e("s_mul_i32 s56, s52, 8192000")
    e("s_lshl_b32 s57, s55, 10")
    e("s_add_u32 s56, s56, s57")
    e("s_lshl_b32 s51, s54, 7")
    e("s_and_b32 s50, s3, 3")
    w_voff(g, "s50")
    e("s_lshl_b32 s59, s50, 10")
    e(f"s_add_u32 s59, s59, {WB}")
    e("s_mul_i32 s56, s52, 8192000")
    e("s_add_u32 s56, s56, s57")
    e("s_mov_b32 s23, 0x20000")
    e("s_mov_b32 s27, 0x20000")
    e("s_mov_b32 s43, 0x20000")
    e(f"s_sub_u32 s22, {X_BYTES}, s56")
    e(f"s_sub_u32 s26, {W_BYTES}, s51")
    e("s_mov_b32 s42, s26")
    e("s_mov_b32 s58, 0xffff0000")
    e("s_waitcnt lgkmcnt(0)")
    e("s_add_u32 s20, s4, s56")
    e("s_addc_u32 s21, s5, 0")
    e("s_add_u32 s24, s6, s51")
    e("s_addc_u32 s25, s7, 0")
    e("s_mov_b32 s40, s24")
    e("s_mov_b32 s41, s25")
    def late_srds():
        e(f"s_mul_i32 s56, s52, {L}")
        e("s_add_u32 s56, s56, s55")
        e("s_lshl_b32 s56, s56, 9")
        e("s_add_u32 s28, s14, s56")
        e("s_addc_u32 s29, s15, 0")
        e(f"s_sub_u32 s30, {L}, s55")
        e(f"s_min_u32 s30, s30, {TS}")
        e("s_lshl_b32 s30, s30, 9")
        e("s_mov_b32 s31, 0x20000")
        e("s_mov_b32 s32, s18"); e("s_mov_b32 s33, s19"); e("s_mov_b32 s34, 0x200000"); e("s_mov_b32 s35, 0x20000")
        e("s_mov_b32 s36, s16"); e("s_mov_b32 s37, s17"); e("s_mov_b32 s38, 256"); e("s_mov_b32 s39, 0x20000")
        e("s_lshl_b32 s48, s52, 2"); e("s_add_u32 s48, s48, s54"); e("s_lshl_b32 s48, s48, 14")
        e("s_lshl_b32 s49, s53, 9"); e("s_add_u32 s49, s49, s48")
    g.pstamp(3)
    e("s_cmp_ge_u32 s3, 4")
    e("s_cbranch_scc1 L_helper")

    e("s_mov_b32 s64, 0")
    w_issue(g)
    g.pstamp(4)
    late_srds()
    e("s_mov_b32 s44, s8"); e("s_mov_b32 s45, s9"); e("s_mov_b32 s46, 512"); e("s_mov_b32 s47, 0x20000")
    e("v_and_b32 v11, 15, v0")
    e("v_lshrrev_b32 v12, 4, v0")
    e("s_lshl_b32 s56, s50, 5")
    e("s_add_u32 s56, s56, s51")
    e("v_lshl_add_u32 v13, v11, 1, s56")
    e(f"buffer_load_ushort v{TM}, v13, s[44:47], 0 offen")
    e(f"s_mov_b32 s60, 0x{FTAB & 0xffffffff:08x}"); e(f"s_mov_b32 s61, 0x{FTAB >> 32:08x}")
    for a in range(2):
        e(f"v_add_u32 v13, {a}, v11")
        e("v_and_b32 v14, 15, v13")
        e("v_lshlrev_b32 v14, 2, v14")
        e("v_lshrrev_b64 v[14:15], v14, s[60:61]")
        e("v_and_b32 v14, 7, v14")
        e("v_xor_b32 v14, v14, v12")
        e("v_lshlrev_b32 v14, 4, v14")
        e(f"v_lshl_add_u32 v{1+a}, v13, 7, v14")
        e(f"v_xor_b32 v{3+a}, 64, v{1+a}")
        e(f"v_add_u32 v{5+a}, {DB}, v{1+a}")
        e(f"v_add_u32 v{7+a}, {DB}, v{3+a}")
    e("v_lshrrev_b32 v13, 2, v11")
    e("v_lshl_add_u32 v14, v12, 3, v13")
    e("v_lshrrev_b32 v13, 1, v13")
    e("v_and_b32 v15, 1, v12")
    e("v_lshl_or_b32 v13, v15, 1, v13")
    e("v_lshlrev_b32 v13, 1, v13")
    e("v_bfe_u32 v15, v0, 1, 1")
    e("s_lshl_b32 s56, s50, 1")
    e("v_or_b32 v15, s56, v15")
    e("v_xor_b32 v13, v13, v15")
    e("v_lshlrev_b32 v13, 4, v13")
    e("v_lshl_add_u32 v9, v14, 7, v13")
    e("v_and_b32 v15, 1, v0")
    e("v_lshl_add_u32 v9, v15, 3, v9")
    e(f"v_add_u32 v9, {WB}, v9")
    e(f"s_mov_b32 s62, {-XBUF & 0xffffffff}")
    if o.cdummy:
        sh = {1: 4, 2: 3, 4: 3}.get(o.cdummy, 2)
        e(f"v_lshlrev_b32 v10, {sh}, v0"); e(f"v_add_u32 v10, {DB}, v10"); e(f"s_mov_b32 m0, {DB & 0xffff}")
    for r in range(32): e(f"v_mov_b32 v{AU+r}, 0")
    for r in range(32): e(f"v_mov_b32 v{AP+r}, 0")
    g.pstamp(5)
    e("s_waitcnt vmcnt(0)")
    g.pstamp(6)
    e(f"v_lshlrev_b32 v{TM}, 16, v{TM}")
    for r in range(32): e(f"v_mov_b32 v{AV+r}, v{TM}")
    if o.cprio: e(f"s_setprio {o.cprio}")
    g.bar()
    g.stamp(1)
    emit(g, pro)
    for p in (0, 1):
        e("s_mov_b32 s64, 4")
        g.l.append(f".p2align {o.align}")
        g.lab(f"L_body{p}")
        emit(g, bodies[p])
        e(f"s_cbranch_scc1 L_body{p}")
    g.stamp(2)
    e("v_add_u32 v13, 16, v0")
    e("v_and_b32 v13, 63, v13")
    e("v_lshlrev_b32 v13, 2, v13")
    e(f"ds_bpermute_b32 v{TM}, v13, v{AU}")
    def pk(op, d, a, b, c=None):
        e(f"v_pk_{op}_f32 v[{d}:{d+1}], v[{a}:{a+1}], v[{b}:{b+1}]" + (f", v[{c}:{c+1}]" if c is not None else ""))
    T2 = TM + 2
    e("s_nop 4")
    for s in range(7):
        for h in (0, 2):
            pk("add", AP + 4 * s + h, AP + 4 * s + h, AV + 4 * s + h)
            pk("add", AV + 4 * s + h, AV + 4 * s + h, AU + 4 * s + h)
            pk("add", AP + 4 * s + h, AP + 4 * s + h, AU + 4 * s + 4 + h)
    for h in (0, 2):
        pk("add", AP + 28 + h, AP + 28 + h, AV + 28 + h)
        pk("add", AV + 28 + h, AV + 28 + h, AU + 28 + h)
    for r in range(3): e(f"v_add_f32 v{AP+28+r}, v{AP+28+r}, v{AU+r+1}")
    e("s_waitcnt lgkmcnt(0)")
    e(f"v_add_f32 v{AP+31}, v{AP+31}, v{TM}")
    e("s_mov_b32 exec_lo, 0"); e("s_mov_b32 exec_hi, 0xffff0000")
    for s in range(5, 8):
        e(f"v_mov_b32 v{AV+4*s+3}, 0"); e(f"v_mov_b32 v{AP+4*s+3}, 0")
    e("s_cmp_lg_u32 s53, 31")
    e("s_cbranch_scc1 L_nolast")
    e(f"v_mov_b32 v{AP+7}, 0")
    for s in range(2, 5):
        e(f"v_mov_b32 v{AV+4*s+3}, 0"); e(f"v_mov_b32 v{AP+4*s+3}, 0")
    g.lab("L_nolast")
    e("s_mov_b64 exec, -1")
    S0, Q0 = AU, AU + 8
    Y0 = AV
    for k in range(4):
        pk("mul", Q0 + 2 * k, Y0 + 2 * k, Y0 + 2 * k)
    for k in range(4):
        r = Y0 + 8 + 2 * k
        pk("add", S0 + 2 * k, r - 8, r); pk("fma", Q0 + 2 * k, r, r, Q0 + 2 * k)
    for m in range(2, 8):
        for k in range(4):
            r = Y0 + 8 * m + 2 * k
            pk("add", S0 + 2 * k, S0 + 2 * k, r); pk("fma", Q0 + 2 * k, r, r, Q0 + 2 * k)
    pk("add", S0, S0, S0 + 2); pk("add", Q0, Q0, Q0 + 2); pk("add", S0 + 4, S0 + 4, S0 + 6); pk("add", Q0 + 4, Q0 + 4, Q0 + 6)
    pk("add", S0, S0, S0 + 4); pk("add", Q0, Q0, Q0 + 4)
    e(f"v_add_f32 v14, v{S0}, v{S0+1}")
    e(f"v_add_f32 v15, v{Q0}, v{Q0+1}")
    e("s_lshl_b32 s56, s50, 7")
    e("s_add_u32 s56, s56, s49")
    e("v_permlane32_swap_b32 v14, v15")
    e("v_lshl_add_u32 v13, v0, 3, s56")
    e("v_add_f32 v14, v14, v15")
    e("v_mov_b32 v15, v14")
    e("s_nop 1")
    e("v_permlane16_swap_b32 v14, v15")
    e("v_add_f32 v14, v14, v15")
    e("v_mov_b32 v15, v14")
    e("s_nop 1")
    e("v_permlane32_swap_b32 v14, v15")
    e("v_and_b32 v15, 0x7fffffff, v15")
    e("s_mov_b64 exec, 0xffff")
    e(f"buffer_store_dwordx2 v[14:15], v13, s[32:35], 0 offen {o.st_flags}")
    e("s_mov_b64 exec, -1")
    g.stamp(3)
    e(f"v_mul_u32_u24 v13, {64*YP}, v12")
    e("s_lshl_b32 s56, s50, 6")
    e("v_lshl_add_u32 v11, v11, 2, s56")
    e("v_add_u32 v13, v13, v11")
    g.bar()
    for s in range(8):
        for ev in range(2):
            for r in range(4):
                e(f"ds_write_b32 v13, v{(AP if ev else AV)+4*s+r} offset:{(2*s+ev+16*r)*YP}")
    e("s_waitcnt lgkmcnt(0)")
    g.bar()
    g.stamp(4)
    e("s_branch L_final_rd")

    g.lab("L_helper")
    g.inhelper = True
    e(f"s_mov_b32 s66, 0x{FTAB & 0xffffffff:08x}"); e(f"s_mov_b32 s67, 0x{FTAB >> 32:08x}")
    e("v_lshrrev_b32 v20, 3, v0")
    e("v_and_b32 v21, 7, v0")
    e("v_lshlrev_b32 v22, 2, v20")
    e("v_lshrrev_b32 v23, v22, s66"); e("v_lshrrev_b32 v24, v22, s67")
    e("v_and_b32 v23, 7, v23"); e("v_and_b32 v24, 7, v24")
    e("v_xor_b32 v23, v23, v21"); e("v_xor_b32 v24, v24, v21")
    e("s_lshr_b32 s56, s50, 1"); e("s_lshl_b32 s56, s56, 10")
    e("s_and_b32 s57, s50, 1"); e("s_lshl_b32 s57, s57, 13"); e("s_add_u32 s56, s56, s57")
    e("v_lshl_add_u32 v22, v20, 14, s56")
    e(f"v_lshl_add_u32 v{XV}, v23, 4, v22")
    e("v_lshl_add_u32 v24, v24, 4, v22")
    e(f"v_add_u32 v{XV+1}, {8*16384}, v24")
    for n in range(2, 8): e(f"v_add_u32 v{XV+n}, {2048*(n>>1)}, v{XV+(n&1)}")
    e("v_lshlrev_b32 v18, 4, v0"); e(f"v_add_u32 v18, {256*1024}, v18")
    e("s_lshl_b32 s67, s50, 13"); e("s_add_u32 s67, s67, 128")
    e("s_cmp_eq_u32 s50, 0"); e("s_cselect_b32 s66, 0, s67")
    e("s_mov_b32 s65, 0")
    HP = Stream()
    for n in range(9): x_one(HP, n, 0, ("X", 0))
    HP.e("s_mov_b32 s64, 16384"); HP.e("s_mov_b32 s60, 1"); HP.e("s_mov_b32 s65, 128")
    for j in range(8): w_one(HP, j, 1, ("W", 1))
    for n in range(9 if o.x1early else 0): x_one(HP, n, 1, ("X", 1))
    HQ = Stream()
    HQ.e("buffer_load_ushort v114, v113, s[44:47], 0 offen", vm=("G", 0), keep=1)
    HQ.e("s_mov_b32 s44, s12"); HQ.e("s_mov_b32 s45, s13")
    HQ.e("buffer_load_ushort v115, v113, s[44:47], 0 offen", vm=("G", 0), keep=1)
    H0 = Stream()
    H0.e("", need=[("X", 0)]); H0.e("s_barrier")
    H1 = Stream()
    for t in range(4): d_reads(H1, t, 0)
    d_mfma(H1, o); H1.e("s_nop 7"); d_cvt(H1)
    H1.e("s_barrier")
    SW = []
    n_ad, n_ag, n_bg = o.nad, o.nag, o.nbg
    for par in range(2):
        nb = par ^ 1
        a1, a2, b1, b2 = Stream(), Stream(), Stream(), Stream()
        seq = [(lambda S, n=n: x_one(S, n, nb, ("X", 1))) for n in range(9)] + [(lambda S, j=j: w_one(S, j, 0, ("W", 2))) for j in range(8)]
        seqb = [(lambda S, j=j: w_one(S, j, 1, ("W", 3))) for j in range(8)]
        for t in range(4): d_write(a1, t)
        for f in seq[:n_ad]: f(a1)
        a1.e("", need=[], lg=1); a1.e("s_barrier")
        for f in seq[n_ad:n_ag]: f(a1)
        a1.e("", need=[("W", 1)]); a1.e("s_barrier")
        for f in seq[n_ag:o.naa]: f(a2)
        for t in ("s_add_u32 s65, s65, 128", "s_add_u32 s61, s61, 1", "s_cmp_ge_u32 s61, 7", "s_cselect_b32 s22, 0, s22"): a2.e(t)
        a2.e("", need=[("X", 1)]); a2.e("s_barrier")
        restb = seq[o.naa:] + seqb
        for t in range(4): d_reads(b1, t, nb)
        for f in restb[:n_bg]: f(b1)
        b1.e("", need=[("W", 2)]); b1.e("s_barrier")
        for f in restb[n_bg:]: f(b2)
        if o.pf:
            b2.e("buffer_load_dword v116, v19, s[44:47], 0 offen", vm=("P", 0)); b2.e("v_add_u32 v19, s63, v19")
        if not o.no_atomic:
            b2.e("s_cmp_lg_u32 s61, s62"); b2.e(f"s_cbranch_scc1 L_nocnt{par}")
            b2.e("s_mov_b64 exec, 1"); b2.e("buffer_atomic_add v118, v117, s[36:39], 0 offen sc1"); b2.e("s_mov_b64 exec, -1")
            b2.e(f"L_nocnt{par}:")
        d_mfma(b2, o); b2.e("s_nop 7"); d_cvt(b2)
        if o.drain: b2.e("s_waitcnt vmcnt(0)")
        b2.e("s_barrier")
        SW.append((a1, a2, b1, b2))
    parts = [(HP, dict(X=0, W=0)), (HQ, dict(G=0)), (H0, dict(X=0)), (H1, {})]
    for st in range(8):
        for k, S in enumerate(SW[st & 1]):
            if not (st == 7 and k == 3): parts.append((S, dict(X=st, W=2 * st, P=0)))
    solve_vm(parts)
    g.pstamp(4)
    if o.pstamps:
        HPa, HPb = Stream(), Stream(); HPa.l = HP.l[:28]; HPb.l = HP.l[28:]
        emit_stream(g, HPa); g.pstamp(5); emit_stream(g, HPb)
    else: emit_stream(g, HP)
    g.pstamp(6)
    late_srds()
    e("s_mov_b32 s44, s10"); e("s_mov_b32 s45, s11"); e("s_mov_b32 s46, 512"); e("s_mov_b32 s47, 0x20000")
    e("v_and_b32 v112, 31, v0")
    e("v_lshrrev_b32 v113, 5, v0")
    e("v_lshl_add_u32 v112, v112, 1, v113")
    e("v_lshl_add_u32 v113, v112, 1, s51")
    emit_stream(g, HQ)
    e("s_mov_b32 s62, 99")
    e("v_mov_b32 v117, 0"); e("v_mov_b32 v118, 0")
    e("s_cmp_lg_u32 s50, 3"); e("s_cbranch_scc1 L_noclean")
    e("v_lshl_add_u32 v117, v0, 3, s49")
    e("v_mov_b32 v118, -1"); e("v_mov_b32 v119, -1")
    e("buffer_store_dwordx2 v[118:119], v117, s[32:35], 0 offen sc1")
    e("s_and_b32 s62, s2, 3"); e("s_add_u32 s62, s62, 2")
    e("s_lshl_b32 s56, s2, 5"); e("s_and_b32 s56, s56, 128")
    e("v_mov_b32 v117, s56"); e("v_mov_b32 v118, 1")
    g.lab("L_noclean")
    if o.pf:
        e("s_mov_b32 s44, s20"); e("s_mov_b32 s45, s21"); e("s_mov_b32 s46, s22")
        e("s_lshl_b32 s56, s54, 16"); e(f"s_add_u32 s56, s56, {128 * o.pfx0}")
        e("v_lshl_add_u32 v19, v0, 10, s56")
        e("s_mov_b32 s63, 128")
        e("s_cmp_eq_u32 s50, 0"); e("s_cbranch_scc1 L_pfj")
        e("s_mov_b32 s44, s6"); e("s_mov_b32 s45, s7"); e(f"s_mov_b32 s46, {W_BYTES}")
        e("s_lshr_b32 s57, s2, 3")
        e("s_lshr_b32 s56, s57, 2"); e("s_lshl_b32 s56, s56, 18")
        e("s_and_b32 s57, s57, 3"); e("s_lshl_b32 s57, s57, 13")
        e("s_add_u32 s56, s56, s57"); e(f"s_add_u32 s56, s56, {32768 * o.pfw0}")
        e("v_lshl_add_u32 v19, v0, 7, s56")
        e("s_mov_b32 s63, 32768")
        e("s_cmp_eq_u32 s50, 1"); e("s_cbranch_scc1 L_pfj")
        e("s_getpc_b64 s[44:45]"); g.lab("L_pc")
        e("s_sub_u32 s44, s44, L_pc - L_body1"); e("s_subb_u32 s45, s45, 0")
        e("s_cmp_eq_u32 s50, 2"); e("s_cselect_b32 s46, L_end - L_body1, 0")
        e("v_lshlrev_b32 v19, 7, v0")
        e("s_mov_b32 s63, 8192")
        g.lab("L_pfj")
    e(f"s_mov_b32 s68, 0x{STAB & 0xffffffff:08x}"); e(f"s_mov_b32 s69, 0x{STAB >> 32:08x}")
    e("v_and_b32 v20, 60, v0")
    e("v_lshrrev_b64 v[20:21], v20, s[68:69]")
    e("v_and_b32 v20, 15, v20")
    e("v_and_b32 v26, 15, v0")
    e("v_lshlrev_b32 v28, 2, v26")
    e("v_lshrrev_b64 v[28:29], v28, s[68:69]")
    e("v_and_b32 v28, 15, v28")
    e(f"s_mov_b32 s68, 0x{FTAB & 0xffffffff:08x}"); e(f"s_mov_b32 s69, 0x{FTAB >> 32:08x}")
    def swz(dst, idx, q):
        e(f"v_and_b32 v22, 15, v{idx}")
        e("v_lshlrev_b32 v22, 2, v22")
        e("v_lshrrev_b64 v[22:23], v22, s[68:69]")
        e("v_and_b32 v22, 7, v22")
        e(f"v_xor_b32 v22, v22, v{q}")
        e("v_lshlrev_b32 v22, 4, v22")
        e(f"v_lshl_add_u32 v{dst}, v{idx}, 7, v22")
    e("v_and_b32 v21, 3, v0")
    e("v_lshrrev_b32 v27, 4, v0")
    swz(30, 20, 21)
    swz(31, 28, 27)
    e("s_lshl_b32 s56, s50, 12")
    e(f"s_add_u32 s57, s56, {OB}")
    e(f"v_add_u32 v{TO}, s57, v30")
    e(f"s_add_u32 s57, s56, {2048+128}")
    e(f"v_add_u32 v{TE}, s57, v30"); e(f"v_add_u32 v{TE+1}, 2048, v{TE}")
    e(f"s_add_u32 s57, s56, {DB}")
    e(f"v_add_u32 v{WD}, s57, v31")
    e("s_cmp_lg_u32 s50, 3"); e("s_cbranch_scc1 L_nowrap")
    e("v_add_u32 v20, 1, v20")
    swz(TE + 1, 20, 21)
    g.lab("L_nowrap")
    e(f"v_xor_b32 v{TO+1}, 64, v{TO}"); e(f"v_xor_b32 v{TE+2}, 64, v{TE}"); e(f"v_xor_b32 v{TE+3}, 64, v{TE+1}")
    e(f"v_xor_b32 v{WD+1}, 64, v{WD}")
    e("v_and_b32 v20, 1, v0"); e("v_lshlrev_b32 v20, 4, v20")
    e("s_movk_i32 s56, 0x3f80"); e("v_lshlrev_b32 v20, v20, s56")
    e("v_bfe_u32 v21, v0, 1, 3"); e("v_lshlrev_b32 v27, 1, v27")
    for r in range(2):
        if r: e("v_add_u32 v27, 1, v27")
        e("v_cmp_eq_u32 vcc, v21, v27"); e("s_nop 1")
        e(f"v_cndmask_b32 v{HS+r}, 0, v20, vcc")
        e(f"v_lshlrev_b32 v23, 3, v{HS+r}")
        e(f"v_and_b32 v23, 0x80008000, v23")
        e(f"v_or_b32 v{HS+2+r}, v{HS+r}, v23")
    e("s_mov_b32 s61, 0")
    if o.hprio: e(f"s_setprio {o.hprio}")
    g.pstamp(7)
    emit_stream(g, H0)
    g.stamp(1)
    emit_stream(g, H1)
    g.lab("L_hloop")
    for par in range(2):
        for k, S in enumerate(SW[par]):
            if o.hstamps and k in (1, 3):
                for r in range(70, 100, 2): e(f"s_mov_b64 s[{r}:{r+1}], s[{r+2}:{r+3}]")
                e("s_memtime s[100:101]"); e("s_waitcnt lgkmcnt(0)")
            if par == 1 and k == 3:
                e("s_cmp_eq_u32 s61, 8"); e("s_cbranch_scc1 L_hdone")
            emit_stream(g, S)
    e("s_branch L_hloop")
    g.lab("L_hdone")
    g.stamp(2)
    e("s_cmp_lg_u32 s3, 4")
    e("s_cbranch_scc1 L_hrest")
    e("v_and_b32 v8, 1, v0"); e("v_lshlrev_b32 v8, 7, v8")
    e("buffer_load_dword v7, v8, s[36:39], 0 offen sc1")
    e("v_lshl_add_u32 v6, v0, 4, s48")
    e("v_mov_b32 v2, v112")
    e("s_movk_i32 s61, 0x1000"); e("s_movk_i32 s62, 0x2000"); e("s_movk_i32 s63, 0x3000")
    e("s_waitcnt vmcnt(1)")
    e("v_lshlrev_b32 v4, 16, v114"); e("v_lshlrev_b32 v5, 16, v115")
    GR = 128
    def gather_loads():
        for u in range(16):
            so = ["0", "s61", "s62", "s63"][u >> 2]
            e(f"buffer_load_dwordx4 v[{GR+4*u}:{GR+4*u+3}], v6, s[32:35], {so} offen offset:{(u&3)*1024} {o.ld_flags}")
    g.bar()
    e("s_mov_b32 s60, 0")
    g.lab("L_chk")
    e("s_waitcnt vmcnt(0)")
    e(f"v_cmp_gt_u32 vcc, {0 if o.no_atomic else 0x80}, v7"); e("s_cbranch_vccz L_chk_ok")
    e("s_add_u32 s60, s60, 1"); e("s_cmp_ge_u32 s60, 0x100000"); e("s_cbranch_scc1 L_chk_ok")
    e("buffer_load_dword v7, v8, s[36:39], 0 offen sc1")
    e("s_branch L_chk")
    g.lab("L_chk_ok")
    gather_loads()
    g.bar()
    def final_reads():
        e("v_lshrrev_b32 v20, 3, v0")
        e("s_lshl_b32 s56, s3, 5")
        e("v_add_u32 v20, s56, v20")
        e("v_and_b32 v21, 7, v0")
        e(f"v_mul_u32_u24 v22, {YP}, v20")
        e("v_lshl_add_u32 v22, v21, 5, v22")
        for rg in range(4):
            e(f"ds_read_b128 v[{64+8*rg}:{64+8*rg+3}], v22 offset:{rg*8*YP}")
            e(f"ds_read_b128 v[{64+8*rg+4}:{64+8*rg+7}], v22 offset:{rg*8*YP+16}")
    final_reads()
    e("s_mov_b32 s60, 0")
    g.lab("L_poll")
    e("s_waitcnt vmcnt(0)")
    e(f"v_or_b32 v14, v{GR+1}, v{GR+3}")
    for u in range(1, 16): e(f"v_or3_b32 v14, v14, v{GR+4*u+1}, v{GR+4*u+3}")
    e("v_cmp_gt_i32 vcc, 0, v14")
    e("s_cbranch_vccz L_poll_ok")
    e("s_add_u32 s60, s60, 1"); e("s_cmp_ge_u32 s60, 0x40000"); e("s_cbranch_scc1 L_poll_ok")
    gather_loads()
    e("s_branch L_poll")
    g.lab("L_poll_ok")
    g.stamp(4)
    for u in range(2, 16):
        d = GR + 4 * (u & 1)
        pk("add", d, d, GR + 4 * u); pk("add", d + 2, d + 2, GR + 4 * u + 2)
    pk("add", GR, GR, GR + 4); pk("add", GR + 2, GR + 2, GR + 6)
    e("s_mov_b32 s61, 0x%08x" % f2u(1.0 / L))
    e("s_nop 0")
    e(f"v_permlane32_swap_b32 v{GR}, v{GR+2}")
    e(f"v_permlane32_swap_b32 v{GR+1}, v{GR+3}")
    e(f"v_add_f32 v10, v{GR}, v{GR+2}")
    e(f"v_add_f32 v11, v{GR+1}, v{GR+3}")
    e("v_mul_f32 v10, s61, v10")
    e("v_mul_f32 v11, s61, v11")
    e("v_fma_f32 v11, -v10, v10, v11")
    e("v_max_f32 v11, 0, v11")
    e("v_add_f32 v11, 0x%08x, v11" % f2u(1e-5))
    e("v_rsq_f32 v11, v11")
    e("v_lshlrev_b32 v12, 2, v2")
    e(f"v_add_u32 v12, {MISC}, v12")
    e("v_mul_f32 v11, v4, v11")
    e("v_fma_f32 v10, -v10, v11, v5")
    e("ds_write_b32 v12, v11")
    e("ds_write_b32 v12, v10 offset:256")
    e("s_branch L_final")
    g.lab("L_hrest")
    e("s_waitcnt vmcnt(0)")
    g.bar()
    g.bar()
    g.lab("L_final_rd")
    final_reads()
    g.lab("L_final")
    Y = 64
    e("v_lshlrev_b32 v23, 9, v20")
    e("v_lshl_add_u32 v23, v21, 4, v23")
    e("v_add_u32 v23, s51, v23")
    e("v_lshlrev_b32 v24, 5, v21")
    e(f"v_add_u32 v24, {MISC}, v24")
    K1 = -2.0 * 0.7978845608028654 * 1.4426950408889634
    K2 = K1 * 0.044715
    e("s_mov_b32 s60, 0x%08x" % f2u(K1)); e("s_mov_b32 s61, 0x%08x" % f2u(K1))
    e("v_mov_b32 v26, 0x%08x" % f2u(K2)); e("v_mov_b32 v27, 0x%08x" % f2u(K2))
    e("s_setprio 0")
    e("s_waitcnt lgkmcnt(0)")
    g.bar()
    g.stamp(5)
    e("ds_read_b128 v[32:35], v24"); e("ds_read_b128 v[40:43], v24 offset:256")
    e("ds_read_b128 v[36:39], v24 offset:16"); e("ds_read_b128 v[44:47], v24 offset:272")
    e("s_waitcnt lgkmcnt(0)")
    for rg in range(4):
        y = Y + 8 * rg; P = 96 + 8 * rg
        for k in range(4): pk("fma", y + 2 * k, y + 2 * k, 32 + 2 * k, 40 + 2 * k)
        for k in range(4): pk("mul", P + 2 * k, y + 2 * k, y + 2 * k)
        for k in range(4): e(f"v_pk_fma_f32 v[{P+2*k}:{P+2*k+1}], v[{P+2*k}:{P+2*k+1}], v[26:27], s[60:61]")
        for k in range(4): pk("mul", P + 2 * k, P + 2 * k, y + 2 * k)
        for k in range(8): e(f"v_exp_f32 v{P+k}, v{P+k}")
        for k in range(4): e(f"v_pk_add_f32 v[{P+2*k}:{P+2*k+1}], v[{P+2*k}:{P+2*k+1}], 1.0 op_sel_hi:[1,0]")
        for k in range(8): e(f"v_rcp_f32 v{P+k}, v{P+k}")
        for k in range(4): pk("mul", y + 2 * k, y + 2 * k, P + 2 * k)
        for k in range(4): e(f"v_cvt_pk_bf16_f32 v{48+4*rg+k}, v{y+2*k}, v{y+2*k+1}")
        e(f"buffer_store_dwordx4 v[{48+4*rg}:{51+4*rg}], v23, s[28:31], 0 offen {o.out_flags}")
        if rg < 3: e("v_add_u32 v23, 4096, v23")
    g.stamp(6)
    if o.stamps:
        e("s_waitcnt vmcnt(0)"); g.stamp(7)
    g.stamp_flush()
    g.lab("L_end")
    e("s_endpgm")
    g.l.append(f""".section .rodata,"a"
.p2align 6
.amdhsa_kernel {KN}
  .amdhsa_next_free_vgpr 256
  .amdhsa_next_free_sgpr 102
  .amdhsa_accum_offset 256
  .amdhsa_group_segment_fixed_size 0
  .amdhsa_kernarg_size 64
  .amdhsa_user_sgpr_count 2
  .amdhsa_user_sgpr_kernarg_segment_ptr 1
  .amdhsa_system_sgpr_workgroup_id_x 1
.end_amdhsa_kernel""")
    return "\n".join(g.l) + "\n"

def parser():
    ap = argparse.ArgumentParser()
    ap.add_argument("-o", default="k2.s")
    ap.add_argument("--stamps", action="store_true")
    for f in ("no-mfma", "no-read", "no-dma", "no-valu", "no-hvalu", "no-hwr", "no-mask", "no-xld", "no-hrd", "no-hw", "wfirst", "no-hwait", "hstamps", "no-atomic", "pstamps"): ap.add_argument("--" + f, action="store_true")
    ap.add_argument("--gammaoff", type=int, default=1)
    ap.add_argument("--alpha", type=int, default=20)
    ap.add_argument("--npe", type=int, default=7)
    ap.add_argument("--npre", type=int, default=2)
    ap.add_argument("--cdummy", type=int, default=0)
    ap.add_argument("--cap", type=int, default=2)
    ap.add_argument("--wpos", default="")
    ap.add_argument("--pfslot", type=int, default=44)
    ap.add_argument("--pfw", type=int, default=2)
    ap.add_argument("--pfx", type=int, default=2)
    ap.add_argument("--pfcode", type=int, default=1)
    ap.add_argument("--pfw0", type=int, default=2)
    ap.add_argument("--pfx0", type=int, default=3)
    ap.add_argument("--pfhalf", type=int, default=0)
    ap.add_argument("--delta", type=int, default=46)
    ap.add_argument("--dshift", type=int, default=2)
    ap.add_argument("--nd", type=int, default=2)
    ap.add_argument("--nad", type=int, default=2)
    ap.add_argument("--nag", type=int, default=6)
    ap.add_argument("--naa", type=int, default=17)
    ap.add_argument("--nbg", type=int, default=3)
    ap.add_argument("--mprio", type=int, default=1)
    ap.add_argument("--drain", type=int, default=0)
    ap.add_argument("--x1early", type=int, default=1)
    ap.add_argument("--align", type=int, default=3)
    ap.add_argument("--vmargin", type=int, default=6)
    ap.add_argument("--lead", type=int, default=24)
    ap.add_argument("--wstep", type=int, default=3)
    ap.add_argument("--nwa", type=int, default=1)
    ap.add_argument("--nwb", type=int, default=5)
    ap.add_argument("--nb", type=int, default=16)
    ap.add_argument("--quiet", type=int, default=10)
    ap.add_argument("--nx1", type=int, default=5)
    ap.add_argument("--amargin", type=int, default=8)
    ap.add_argument("--minlat", type=int, default=8)
    ap.add_argument("--waitahead", type=int, default=12)
    ap.add_argument("--cprio", type=int, default=0)
    ap.add_argument("--hprio", type=int, default=0)
    ap.add_argument("--pf", type=int, default=1)
    ap.add_argument("--st-flags", default="sc1")
    ap.add_argument("--ld-flags", default="sc1")
    ap.add_argument("--out-flags", default="")
    return ap
if __name__ == "__main__":
    o = parser().parse_args()
    open(o.o, "w").write(gen(o))
```

```python
import argparse, struct
KN = "standalone__self_sup_conv_stem_hubert__speech_kernel"
X_BYTES = 2 * 16000 * 512
W_BYTES = 15 * 256 * 512
L = 7993
TS = 250
XBUF = 257 * 128
OB = 129 * 128
DB = 2 * XBUF
WB = DB + 131 * 128
MISC = WB + 65536
def clsE(c): return (16 * c + (c > 0)) * 128
def clsO(c): return OB + 16 * c * 128
def clsD(c): return 16 * c * 128
SIG = [1, 3, 9, 11, 4, 12, 10, 14, 5, 7, 13, 15, 0, 2, 8, 6]
STAB = sum(v << (4 * i) for i, v in enumerate(SIG))
LDS = MISC + 512
FTAB = 0x7762574435221100
YP = 272
def f2u(x): return struct.unpack("<I", struct.pack("<f", x))[0]
def ftab(i): return (FTAB >> (4 * (i & 15))) & 7

AU, AV, AP = 16, 48, 80
FR, BE, BO, CR, TM, PFD = 112, 188, 204, 220, 236, 244
SLOT = {"E": [0, 1, 2, 15, 16, 17, 18, 7, 8, 9, 10], "O": [0, 1, 2, 3, 4, 5, 6, 11, 12, 13, 14], "D": list(range(11))}
G2A = {"U": "E", "V": "O", "P": "D"}
def freg(arr, u): return FR + 4 * SLOT[arr][u]
def rng(b, n=4): return f"v[{b}:{b+n-1}]"

class G:
    def __init__(self, o):
        self.o = o; self.l = []; self.inhelper = False
    def e(self, s): self.l.append("    " + s)
    def lab(self, s): self.l.append(s + ":")
    def c(self, s): self.l.append("    ; " + s)
    def bar(self):
        self.e("s_barrier")
    def pstamp(self, p):
        if self.o.pstamps: self.stamp(p, True)
    def stamp(self, p, force=False):
        if not self.o.stamps or (self.o.hstamps and self.inhelper): return
        if self.o.pstamps and p > 2 and not force: return
        b = 70 + 4 * p
        self.e(f"s_memrealtime s[{b}:{b+1}]"); self.e(f"s_memtime s[{b+2}:{b+3}]"); self.e("s_waitcnt lgkmcnt(0)")
    def stamp_init(self):
        if not self.o.stamps: return
        for r in range(70, 102, 2): self.e(f"s_mov_b64 s[{r}:{r+1}], 0")
    def stamp_flush(self):
        if not self.o.stamps: return
        e = self.e
        e("s_waitcnt vmcnt(0) lgkmcnt(0)")
        e("s_lshl_b32 s56, s2, 3"); e("s_add_u32 s56, s56, s3"); e("s_lshl_b32 s56, s56, 7"); e("s_add_u32 s56, s56, 0x100000")
        e("v_mov_b32 v10, s56"); e("s_mov_b64 exec, 1")
        for p in range(8):
            b = 70 + 4 * p
            for k in range(4): e(f"v_mov_b32 v{12+k}, s{b+k}")
            e(f"buffer_store_dwordx4 v[12:15], v10, s[32:35], 0 offen offset:{16*p}"); e("s_waitcnt vmcnt(0)")

def umajor(K): return [(u - s_, s_, u) for u in range(7 + K) for s_ in range(min(u, 7), -1, -1) if 0 <= u - s_ < K]

def sub_ops(dst, a, b, t):
    return [(f"v_lshlrev_b32 v{t}, 16, v{a}", [a], [t]), (f"v_lshlrev_b32 v{t+2}, 16, v{b}", [b], [t + 2]),
            (f"v_and_b32 v{t+1}, s58, v{a}", [a], [t + 1]), (f"v_and_b32 v{t+3}, s58, v{b}", [b], [t + 3]),
            (f"v_sub_f32 v{t}, v{t}, v{t+2}", [t, t + 2], [t]), (f"v_sub_f32 v{t+1}, v{t+1}, v{t+3}", [t + 1, t + 3], [t + 1]),
            (f"v_cvt_pk_bf16_f32 v{dst}, v{t}, v{t+1}", [t, t + 1], [dst])]
def chain(units):
    out = []
    for u in units:
        if out and len(u) == 7:
            last = out.pop(); out += [u[0], last] + u[1:]
        else: out += u
    return out
def cunit(k, r): return sub_ops(CR + 4 * k + r, BE + 4 * k + r, BO + 4 * k + r, TM + 4 * (r & 1))

class Period:
    def __init__(self, p, cc, o):
        self.p = p
        KV = 4 - p
        N = self.N = 96 - 8 * p
        P0 = self.P0 = 64 - 8 * p
        self.alpha = o.alpha; self.gamma = P0 + o.gammaoff
        self.delta = (o.delta - (o.dshift if p else 0)) if cc == 0 else -1
        mf = []
        for k, s, u in umajor(4): mf.append(("U", k, s, u))
        for k, s, u in umajor(KV): mf.append(("V", k, s, u))
        for k in range(4):
            for s in range(8): mf.append(("P", k, s, s + k))
        assert len(mf) == N
        self.mf = mf
        first = {}; last = {}
        for i, (g, k, s, u) in enumerate(mf):
            for key in ((g, "F", u), (g, "B", k)):
                first.setdefault(key, i); last[key] = i
        c0s = self.gamma + 4 + o.minlat
        npre = o.npre
        if p == 0: win = {1: (10, 60), 2: (28, 70), 3: (44, N - 12)}
        else: win = {1: (10, 60), 2: (30, 70), 3: (44, N - 12)}
        valu = []
        valu.append((0, 30, chain([cunit(0, r) for r in range(npre, 4)]), 0))
        for k in (1, 2, 3):
            if p == 1 and k == 3:
                ops = [(f"v_mov_b32 v{CR+12+r}, v{BE+12+r}", [BE + 12 + r], [CR + 12 + r]) for r in range(4)]
            else:
                ops = chain([cunit(k, r) for r in range(4)])
            valu.append((win[k][0], win[k][1], ops, 0))
        valu.append((c0s, N, chain([cunit(0, r) for r in range(npre)]), 1))
        self.npre = npre
        ld = []
        lim = self.alpha - o.amargin
        lim2 = self.gamma - o.amargin
        def free_after(arr, u, limit):
            ts = [i for i, (g_, k_, s_, u_) in enumerate(mf) if i < limit and SLOT[G2A[g_]][u_] == SLOT[arr][u]]
            return max(ts) if ts else 0
        npe = o.npe
        for u in range(npe, 11): ld.append((("E", u), 0, 0, first[("U", "F", u)], lim2))
        for k in range(2, KV):
            for h in (0, 1): ld.append((("Bo", k, h), 0, 0, min(win[k][0], first[("V", "B", k)]), lim))
        for u in range(7 + KV):
            ld.append((("O", u), 0, free_after("O", u, 32), first[("V", "F", u)], self.alpha if cc == 0 else lim2))
        for u in range(11):
            ld.append((("D", u), 0, max(self.delta, 1, free_after("D", u, P0)), first[("P", "F", u)], N - 1))
        b = self.gamma
        for h in (0, 1):
            ld.append((("Be", 0, h), 1, b, c0s, N - 1)); ld.append((("Bo", 0, h), 1, b, c0s, N - 1))
            ld.append((("Be", 1, h), 1, b, N + first[("U", "B", 1)], N - 1))
            ld.append((("Bo", 1, h), 1, b, N + 10, N - 1))
            ld.append((("Be", 2, h), 1, max(b, win[2][1]), N + first[("U", "B", 2)], N - 1))
            ld.append((("Be", 3, h), 1, max(b, win[3][1]), N + first[("U", "B", 3)], N - 1))
        for u in range(npe): ld.append((("E", u), 1, max(b, free_after("E", u, N)), N + first[("U", "F", u)], N - 1))
        slots = [[] for _ in range(N)]
        pend = list(ld)
        def dl(x): return min(x[3], x[4] + o.minlat)
        for t in range(N):
            av = [x for x in pend if x[2] <= t and dl(x) - t <= o.lead and not (self.alpha < t < self.delta)]
            if not av: continue
            x = min(av, key=lambda x: (dl(x), ld.index(x)))
            pend.remove(x)
            assert t <= x[4], (p, x, t)
            assert x[3] - t >= o.minlat, (p, x, t)
            slots[t].append(("ld", x[0], x[1]))
        assert not pend, pend
        self.slots = slots
        self.valu = valu
        self.pre = [it for t in range(N) for it in slots[t] if it[2] == 1]

def ld_dst(name):
    if name[0] in "EOD": return list(range(freg(*name), freg(*name) + 4))
    base = BE if name[0] == "Be" else BO
    r = base + 4 * name[1] + 2 * name[2]
    return [r, r + 1]
def ld_text(name, cc):
    if name[0] in "EOD":
        u = name[1]; a = u >> 3
        if name[0] == "D": return f"ds_read_b128 {rng(freg(*name))}, v{5 + a + 2*cc} offset:{clsD(u & 7)}"
        return f"ds_read_b128 {rng(freg(*name))}, v{1 + a + 2*cc} offset:{(clsE if name[0] == 'E' else clsO)(u & 7)}"
    d = ld_dst(name)
    j = 2 * name[1] + (name[0] == "Bo")
    return f"ds_read_b64_tr_b16 v[{d[0]}:{d[1]}], v9 offset:{cc * 32768 + j * 4096 + name[2] * 512}"

def build_bodies(o):
    per = {(p, cc): Period(p, cc, o) for p in (0, 1) for cc in (0, 1)}
    bodies = {}
    for p in (0, 1):
        body = []
        for cc in (0, 1):
            P = per[(p, cc)]
            vs = [[] for _ in range(P.N)]
            extra = [[] for _ in range(P.N)]
            if o.cdummy:
                txt = {1: f"ds_write_b128 v10, v[{PFD}:{PFD+3}]", 2: f"ds_write_b64 v10, v[{PFD}:{PFD+1}]", 3: f"ds_write_b32 v10, v{PFD}",
                       4: f"ds_write_b64 v10, v[{PFD}:{PFD+1}]", 5: f"ds_write_b32 v10, v{PFD}", 6: f"ds_write_addtid_b32 v{PFD}"}[o.cdummy]
                ts = {4: (10, 12, 50, 52), 5: (10, 11, 12, 13, 50, 51, 52, 53), 6: (10, 11, 12, 13, 50, 51, 52, 53)}.get(o.cdummy, (10, 50))
                for t in ts: extra[t].append(dict(k="l", name=("Z", 0), rel=0, cc=cc, wr=[], t=txt + f" offset:{1024*(t&3)}"))
            if cc == 1:
                extra[P.gamma - 9].append(dict(k="x", t="s_sub_u32 s62, 0, s62"))
                for q in range(4): extra[P.gamma - 8 + 2 * q].append(dict(k="x", t=f"v_add_u32 v{1+q}, s62, v{1+q}"))
                extra[P.N - 3].append(dict(k="x", t="s_sub_u32 s64, s64, 1"))
                extra[P.N - 2].append(dict(k="x", t="s_cmp_lg_u32 s64, 0"))
            stream = [(a, b, op, rel) for (a, b, ops, rel) in P.valu for op in ops]
            tend = P.N - o.vmargin
            pos = 0
            for t in range(P.N):
                cap = o.cap - len(P.slots[t]) - len(extra[t]) - (1 if t in (P.alpha, P.gamma, P.delta) else 0)
                cap = min(cap, 2)
                want = -(-(t + 1) * len(stream) // tend)
                while cap > 0 and pos < min(want, len(stream)) and stream[pos][0] <= t:
                    a, b, (tx, rd, wr), rel = stream[pos]
                    assert t < b, ("valu late", p, t, stream[pos])
                    vs[t].append(dict(k="v", t=tx, rd=rd, wr=wr, rel=rel)); pos += 1; cap -= 1
            assert pos == len(stream), ("valu overflow", p, pos)
            for t, (g, k, s, u) in enumerate(P.mf):
                acc = {"U": AU, "V": AV, "P": AP}[g] + 4 * s
                bop = {"U": BE, "V": BO, "P": CR}[g] + 4 * k
                body.append(dict(k="m", t=f"v_mfma_f32_16x16x32_bf16 {rng(acc)}, {rng(freg(G2A[g], u))}, {rng(bop)}, {rng(acc)}",
                                 g=g, kk=k, u=u, cc=cc, slot=t, rd=list(range(freg(G2A[g], u), freg(G2A[g], u) + 4)) + list(range(bop, bop + 4))))
                if t == P.delta: body.append(dict(k="b", which="d", cc=cc, t="s_barrier"))
                if t == P.gamma and cc == 0 and p == 0: body.append(dict(k="x", t="s_waitcnt vmcnt(0)"))
                if t == P.gamma: body.append(dict(k="b", which="g", cc=cc, t="s_barrier"))
                for it in P.slots[t]:
                    body.append(dict(k="l", name=it[1], rel=it[2], cc=cc, t=ld_text(it[1], cc ^ it[2]), wr=ld_dst(it[1])))
                if t == P.alpha: body.append(dict(k="b", which="a", cc=cc, t="s_barrier"))
                body += vs[t]; body += extra[t]
        bodies[p] = body
    pro = [dict(k="l", name=it[1], rel=1, cc=1, t=ld_text(it[1], 0), wr=ld_dst(it[1])) for it in per[(0, 1)].pre]
    pro += [dict(k="v", t=tx, rd=rd, wr=wr, rel=1) for tx, rd, wr in chain([cunit(0, r) for r in range(o.npre)])]
    pro.append(dict(k="x", t="s_nop 0", wait=0))
    def run(final):
        changed = False
        issued = []
        mark = -1
        tag = {}
        now = 0
        seq = [(pro, -1)] + [(bodies[st >> 2], st) for st in range(8)]
        for code, st in seq:
            for ins in code:
                i = 2 * st + ins.get("cc", 0) if st >= 0 else -1
                if ins["k"] == "v" and st >= 0: i = cur
                if ins["k"] == "m": cur = i; now += 1
                need = -1
                if ins["k"] in "mv":
                    for r in ins["rd"]:
                        if r in tag: need = max(need, tag[r][1])
                if ins["k"] == "b":
                    kinds = {"a": ("Be", "Bo", "D"), "g": ("E", "O"), "d": ()}[ins["which"]]
                    for j, (x, sc, _) in enumerate(issued):
                        if x["name"][0] in kinds and sc <= (i if x["name"][0] != "D" else i - 1): need = max(need, j)
                if "wait" in ins: mark = max(mark, len(issued) - 1 - ins["wait"])
                if need > mark:
                    assert not final
                    n = len(issued) - 1 - need
                    recent = sum(1 for (_, _, tt) in issued if tt > now - o.waitahead)
                    n = min(n, recent, 15)
                    ins["wait"] = min(n, ins.get("wait", 99)); changed = True
                    mark = max(mark, len(issued) - 1 - ins["wait"])
                if ins["k"] == "l":
                    sc = i + ins["rel"]
                    issued.append((ins, sc, now))
                    for q, r in enumerate(ins["wr"]): tag[r] = ((ins["name"], sc, q), len(issued) - 1)
                elif ins["k"] == "v":
                    sc = i + ins["rel"]
                    for r in ins["rd"]:
                        if BE <= r < BO + 16:
                            nm, s2, q = tag[r][0]
                            base = BE if r < BO else BO
                            assert nm == (("Be" if r < BO else "Bo"), (r - base) >> 2, ((r - base) >> 1) & 1) and s2 == sc, (ins, tag[r], sc)
                    for r in ins["wr"]: tag[r] = (("val", sc, now), -1)
                elif ins["k"] == "m":
                    arr = {"U": "E", "V": "O", "P": "D"}[ins["g"]]
                    for q, r in enumerate(ins["rd"][:4]): assert tag[r][0] == ((arr, ins["u"]), i, q), (ins, tag[r], i)
                    for q, r in enumerate(ins["rd"][4:]):
                        if ins["g"] == "P": assert tag[r][0][0] == "val" and tag[r][0][1] == i and tag[r][0][2] < now - 1, (ins, tag[r])
                        else: assert tag[r][0][:2] == ((("Be" if ins["g"] == "U" else "Bo"), ins["kk"], q >> 1), i), (ins, tag[r], i)
        return changed
    while run(False): pass
    run(True)
    return pro, bodies

def emit(g, code):
    o = g.o
    for ins in code:
        if "wait" in ins and not o.no_read: g.e(f"s_waitcnt lgkmcnt({ins['wait']})")
        if ins["k"] == "m" and o.no_mfma: continue
        if ins["k"] == "l" and o.no_read: continue
        if ins["k"] == "v" and o.no_valu: continue
        g.e(ins["t"].replace("s[60-PF]", "s[96:99]" if False else "s[44:47]"))

HA, HC, HD, HS = 32, 64, 96, 24
XV, TO, TE, WD = 2, 10, 12, 16
class Stream:
    def __init__(self): self.l = []
    def e(self, t, **k): self.l.append(dict(t=t, **k))
def w_one(S, j, slot, tag):
    if j == 0:
        S.e(f"s_add_u32 m0, s59, {slot*32768}"); S.e("s_mov_b32 s57, s64")
    else:
        S.e(f"s_add_u32 m0, s59, {slot*32768+j*4096}"); S.e("s_add_u32 s57, s57, 262144")
    S.e(f"buffer_load_dwordx4 v1, {'s[40:43]' if j == 7 else 's[24:27]'}, s57 offen lds", vm=tag)
    if j == 7:
        for t in ("s_add_u32 s60, s60, 1", "s_add_u32 s64, s64, 16384", "s_cmp_eq_u32 s60, 8", "s_cselect_b32 s42, 0, s42",
                  "s_cmp_eq_u32 s60, 16", "s_cselect_b32 s26, 0, s26"): S.e(t)
def x_one(S, n, buf, tag, so="s65"):
    if n < 8:
        S.e(f"s_add_u32 m0, s{66 + (n >> 1)}, {buf*XBUF + (n & 1)*1024}"); S.e("s_nop 0")
        S.e(f"buffer_load_dwordx4 v{XV+n}, s[20:23], {so} offen lds", vm=tag)
    else:
        S.e(f"s_mov_b32 m0, {buf*XBUF + 16*128}"); S.e("s_mov_b64 exec, 0xff")
        S.e(f"buffer_load_dwordx4 v18, s[20:23], {so} offen lds", vm=tag); S.e("s_mov_b64 exec, -1")
def d_reads(S, t, buf):
    cl, half = t & 1, t >> 1
    for mf in range(2):
        r = HA + 8 * t + 4 * mf
        S.e(f"ds_read_b64_tr_b16 v[{r}:{r+1}], v{TO+half} offset:{buf*XBUF + cl*2048 + 8*mf}", ds=1)
        S.e(f"ds_read_b64_tr_b16 v[{r+2}:{r+3}], v{TE+cl+2*half} offset:{buf*XBUF + 8*mf}", ds=1)
def d_mfma(S, o):
    S.e("s_waitcnt lgkmcnt(0)", ds=1)
    if o.mprio: S.e(f"s_setprio {o.mprio}")
    for q in range(8): S.e(f"v_mfma_f32_16x16x32_bf16 {rng(HC+4*q)}, {rng(HA+4*q)}, {rng(HS)}, 0", hv=1)
    if o.mprio: S.e(f"s_setprio {o.hprio}")
def d_cvt(S):
    for q in range(16): S.e(f"v_cvt_pk_bf16_f32 v{HD+q}, v{HC+2*q}, v{HC+2*q+1}", hv=1)
def d_write(S, t): S.e(f"ds_write_b128 v{WD+(t>>1)}, {rng(HD+4*t)} offset:{(t&1)*2048}", ds=1)
def solve_vm(parts):
    for S, env in parts:
        for ins in S.l:
            if "need" in ins: ins.setdefault("n", 63)
    issued = []
    for S, env in parts:
        for ins in S.l:
            if "vm" in ins: issued.append((ins["vm"][0], env[ins["vm"][0]] + ins["vm"][1]))
            if "need" in ins:
                for nm, off in ins["need"]:
                    key = (nm, env[nm] + off)
                    idx = [j for j, k in enumerate(issued) if k == key]
                    if idx: ins["n"] = min(ins["n"], len(issued) - 1 - idx[-1])
def emit_stream(g, S):
    o = g.o
    for ins in S.l:
        if "need" in ins:
            w = []
            if ins["n"] < 63 and not o.no_dma: w.append(f"vmcnt({ins['n']})")
            if ins.get("lg") and not o.no_hwait: w.append("lgkmcnt(0)")
            if w: g.e("s_waitcnt " + " ".join(w))
            continue
        if "vm" in ins and o.no_dma and not ins.get("keep"): continue
        if ins.get("hv") and o.no_hvalu: continue
        if ins.get("ds") and o.no_hwr: continue
        if o.no_hrd and ins["t"].startswith("ds_read"): continue
        if o.no_hw and ins["t"].startswith("ds_write"): continue
        if ins["t"].endswith(":"): g.l.append(ins["t"])
        else: g.e(ins["t"])
def w_rot(S, slot, tag, js, v=10):
    for j in js:
        S.e(f"s_add_u32 s56, s47, {j}"); S.e("s_and_b32 s56, s56, 7")
        S.e("s_lshl_b32 s57, s56, 12"); S.e("s_add_u32 s57, s57, s59"); S.e(f"s_add_u32 m0, s57, {slot*32768}")
        S.e("s_lshl_b32 s57, s56, 18"); S.e(f"s_add_u32 s57, s57, {slot*16384}")
        S.e(f"buffer_load_dwordx4 v{v}, s[24:27], s57 offen lds", vm=tag)
def w_voff(g, hreg, dst=1):
    e = g.e
    e("v_lshrrev_b32 v15, 3, v0")
    e(f"s_lshl_b32 s56, {hreg}, 3")
    e("v_add_u32 v1, s56, v15")
    e("v_bfe_u32 v15, v0, 4, 1")
    e(f"s_and_b32 s56, {hreg}, 1")
    e("s_lshl_b32 s56, s56, 1")
    e("v_or_b32 v15, s56, v15")
    e("v_lshlrev_b32 v15, 1, v15")
    e("v_and_b32 v14, 7, v0")
    e("v_xor_b32 v15, v15, v14")
    e("v_lshlrev_b32 v15, 4, v15")
    e(f"v_lshl_add_u32 v{dst}, v1, 9, v15")

def gen(o):
    global WFIRST
    WFIRST = o.wfirst
    g = G(o); e = g.e
    pro, bodies = build_bodies(o)
    g.l.append(f"""; Fused strided conv1d + per-channel GroupNorm over time + tanh-GELU, one workgroup per CU.
; is evaluated with the 2-parallel fast-FIR identity (U = E*Be, V = O*Bo, P = (O-E')*(Be-Bo);
; @launch grid=(256,1,1) block=(512,1,1) lds={LDS}
.amdgcn_target "amdgcn-amd-amdhsa--gfx950"
.text
.globl {KN}
.p2align 8
.type {KN},@function
{KN}:""")
    e("s_cmp_ge_u32 s2, 256")
    e("s_cbranch_scc1 L_end")
    e("s_load_dwordx16 s[4:19], s[0:1], 0")
    if o.pfcode:
        g.c("pull the whole code into L2 at once instead of line by line")
        e("s_getpc_b64 s[44:45]"); g.lab("L_pc0")
        e("s_mov_b32 s46, L_end - L_pc0"); e("s_mov_b32 s47, 0x20000")
        e("s_lshr_b32 s56, s2, 3"); e(f"s_mul_i32 s56, s56, {128 * o.pfcode}")
        e("v_lshl_add_u32 v1, v0, 7, s56")
        e(f"v_cmp_gt_u32 vcc, {o.pfcode}, v0"); e("s_and_saveexec_b64 s[56:57], vcc"); e("s_cbranch_execz L_nopf")
        e("buffer_load_dword v250, v1, s[44:47], 0 offen")
        g.lab("L_nopf")
        e("s_mov_b64 exec, s[56:57]")
    g.stamp_init(); g.stamp(0)
    e("v_lshrrev_b32 v1, 6, v0")
    e("v_and_b32 v0, 63, v0")
    e("v_readfirstlane_b32 s3, v1")
    e("s_lshr_b32 s57, s2, 3")
    e("s_and_b32 s54, s57, 3")
    e("s_lshr_b32 s47, s2, 5")
    e("s_and_b32 s56, s2, 7")
    e("s_lshl_b32 s58, s56, 3")
    e("s_add_u32 s58, s58, s47")
    e("s_lshr_b32 s52, s58, 5")
    e("s_and_b32 s53, s58, 31")
    e(f"s_mul_i32 s55, s53, {TS}")
    e("s_lshl_b32 s51, s54, 7")
    e("s_and_b32 s50, s3, 3")
    e("s_lshl_b32 s59, s50, 10")
    e(f"s_add_u32 s59, s59, {WB}")
    e("s_mov_b32 s58, 0xffff0000")
    def x_srd():
        e("s_mul_i32 s56, s52, 8192000")
        e("s_lshl_b32 s57, s55, 10")
        e("s_add_u32 s56, s56, s57")
        e(f"s_sub_u32 s22, {X_BYTES}, s56")
        e("s_mov_b32 s23, 0x20000")
        return ["s_add_u32 s20, s4, s56", "s_addc_u32 s21, s5, 0"]
    def w_srd():
        e(f"s_sub_u32 s26, {W_BYTES}, s51")
        e("s_mov_b32 s27, 0x20000")
        return ["s_add_u32 s24, s6, s51", "s_addc_u32 s25, s7, 0"]
    def late_srds():
        e(f"s_mul_i32 s56, s52, {L}")
        e("s_add_u32 s56, s56, s55")
        e("s_lshl_b32 s56, s56, 9")
        e("s_add_u32 s28, s14, s56")
        e("s_addc_u32 s29, s15, 0")
        e(f"s_sub_u32 s30, {L}, s55")
        e(f"s_min_u32 s30, s30, {TS}")
        e("s_lshl_b32 s30, s30, 9")
        e("s_mov_b32 s31, 0x20000")
        e("s_mov_b32 s32, s18"); e("s_mov_b32 s33, s19"); e("s_mov_b32 s34, 0x200000"); e("s_mov_b32 s35, 0x20000")
        e("s_mov_b32 s36, s16"); e("s_mov_b32 s37, s17"); e("s_mov_b32 s38, 256"); e("s_mov_b32 s39, 0x20000")
        e("s_lshl_b32 s48, s52, 2"); e("s_add_u32 s48, s48, s54"); e("s_lshl_b32 s48, s48, 14")
        e("s_lshl_b32 s49, s53, 9"); e("s_add_u32 s49, s49, s48")
    e("s_cmp_lt_u32 s3, 4")
    e("s_cbranch_scc1 L_compute")
    e(f"s_mov_b32 s66, 0x{FTAB & 0xffffffff:08x}"); e(f"s_mov_b32 s67, 0x{FTAB >> 32:08x}")
    e("v_lshrrev_b32 v20, 3, v0")
    e("v_and_b32 v21, 7, v0")
    e("v_lshlrev_b32 v22, 2, v20")
    e("v_lshrrev_b32 v23, v22, s66"); e("v_lshrrev_b32 v24, v22, s67")
    e("v_and_b32 v23, 7, v23"); e("v_and_b32 v24, 7, v24")
    e("v_xor_b32 v23, v23, v21"); e("v_xor_b32 v24, v24, v21")
    e("s_lshr_b32 s56, s50, 1"); e("s_lshl_b32 s56, s56, 10")
    e("s_and_b32 s57, s50, 1"); e("s_lshl_b32 s57, s57, 13"); e("s_add_u32 s56, s56, s57")
    e("v_lshl_add_u32 v22, v20, 14, s56")
    e(f"v_lshl_add_u32 v{XV}, v23, 4, v22")
    e("v_lshl_add_u32 v24, v24, 4, v22")
    e(f"v_add_u32 v{XV+1}, {8*16384}, v24")
    e("v_lshlrev_b32 v18, 4, v0"); e(f"v_add_u32 v18, {256*1024}, v18")
    e("s_lshl_b32 s56, s50, 13")
    for k in (3, 2, 1, 0):
        e(f"s_add_u32 s57, s54, {k}" if o.rot else f"s_mov_b32 s57, {k}"); e("s_and_b32 s57, s57, 3"); e("s_lshl_b32 s57, s57, 11")
        e(f"v_add_u32 v{XV+2*k+1}, s57, v{XV+1}"); e(f"v_add_u32 v{XV+2*k}, s57, v{XV}")
        e(f"s_add_u32 s{66+k}, s56, s57")
        e(f"s_cmp_lg_u32 s{66+k}, 0"); e("s_cselect_b32 s57, 128, 0"); e(f"s_add_u32 s{66+k}, s{66+k}, s57")
    e("s_mov_b32 s65, 0"); e("s_mov_b32 s64, 128")
    fin = x_srd()
    e("s_waitcnt lgkmcnt(0)")
    for t in fin: e(t)
    g.pstamp(3)
    HX0 = Stream()
    for n in range(o.r1): x_one(HX0, n, 0, ("X", 0))
    emit_stream(g, HX0)
    e("s_branch L_helper")

    g.lab("L_compute")
    w_voff(g, "s50", 10)
    if o.cpf:
        e("s_lshl_b32 s56, s47, 18"); e("s_lshl_b32 s57, s54, 13"); e("s_add_u32 s56, s56, s57")
        e("s_lshl_b32 s57, s50, 11"); e("s_add_u32 s56, s56, s57"); e("s_add_u32 s56, s56, 32768")
        e("v_lshl_add_u32 v2, v0, 7, s56")
        e(f"s_mov_b32 s42, {W_BYTES}"); e("s_mov_b32 s43, 0x20000")
    fin = w_srd()
    e("s_waitcnt lgkmcnt(0)")
    for t in fin: e(t)
    g.pstamp(3)
    S = Stream()
    w_rot(S, 0, ("W", 0), range(o.r1))
    w_rot(S, 1, ("W", 0), range(o.w1share))
    emit_stream(g, S)
    if o.cpf:
        e("s_mov_b32 s40, s6"); e("s_mov_b32 s41, s7"); e("s_mov_b64 exec, 0xffff")
        e("buffer_load_dword v249, v2, s[40:43], 0 offen"); e("s_mov_b64 exec, -1")
    e("s_mov_b32 s10, 512"); e("s_mov_b32 s11, 0x20000")
    e("v_and_b32 v11, 15, v0")
    e("v_lshrrev_b32 v12, 4, v0")
    e("s_lshl_b32 s56, s50, 5")
    e("s_add_u32 s56, s56, s51")
    e("v_lshl_add_u32 v13, v11, 1, s56")
    e(f"buffer_load_ushort v{TM}, v13, s[8:11], 0 offen")
    g.pstamp(4)
    late_srds()
    e(f"s_mov_b32 s60, 0x{FTAB & 0xffffffff:08x}"); e(f"s_mov_b32 s61, 0x{FTAB >> 32:08x}")
    for a in range(2):
        e(f"v_add_u32 v13, {a}, v11")
        e("v_and_b32 v14, 15, v13")
        e("v_lshlrev_b32 v14, 2, v14")
        e("v_lshrrev_b64 v[14:15], v14, s[60:61]")
        e("v_and_b32 v14, 7, v14")
        e("v_xor_b32 v14, v14, v12")
        e("v_lshlrev_b32 v14, 4, v14")
        e(f"v_lshl_add_u32 v{1+a}, v13, 7, v14")
        e(f"v_xor_b32 v{3+a}, 64, v{1+a}")
        e(f"v_add_u32 v{5+a}, {DB}, v{1+a}")
        e(f"v_add_u32 v{7+a}, {DB}, v{3+a}")
    e("v_lshrrev_b32 v13, 2, v11")
    e("v_lshl_add_u32 v14, v12, 3, v13")
    e("v_lshrrev_b32 v13, 1, v13")
    e("v_and_b32 v15, 1, v12")
    e("v_lshl_or_b32 v13, v15, 1, v13")
    e("v_lshlrev_b32 v13, 1, v13")
    e("v_bfe_u32 v15, v0, 1, 1")
    e("s_lshl_b32 s56, s50, 1")
    e("v_or_b32 v15, s56, v15")
    e("v_xor_b32 v13, v13, v15")
    e("v_lshlrev_b32 v13, 4, v13")
    e("v_lshl_add_u32 v9, v14, 7, v13")
    e("v_and_b32 v15, 1, v0")
    e("v_lshl_add_u32 v9, v15, 3, v9")
    e(f"v_add_u32 v9, {WB}, v9")
    e(f"s_mov_b32 s62, {-XBUF & 0xffffffff}")
    if o.cdummy:
        sh = {1: 4, 2: 3, 4: 3}.get(o.cdummy, 2)
        e(f"v_lshlrev_b32 v10, {sh}, v0"); e(f"v_add_u32 v10, {DB}, v10"); e(f"s_mov_b32 m0, {DB & 0xffff}")
    for r in range(32): e(f"v_mov_b32 v{AU+r}, 0")
    for r in range(32): e(f"v_mov_b32 v{AP+r}, 0")
    S = Stream()
    w_rot(S, 0, ("W", 0), range(o.r1, 8))
    if o.bara: S.e("s_barrier")
    w_rot(S, 1, ("W", 0), range(o.w1share, 8))
    emit_stream(g, S)
    if o.x1share:
        for t in x_srd(): e(t)
        e("s_lshl_b32 s56, s54, 16"); e("s_lshl_b32 s57, s50, 14"); e("s_add_u32 s56, s56, s57"); e("s_add_u32 s56, s56, 128")
        e("v_lshl_add_u32 v13, v0, 10, s56")
        e("s_mov_b64 exec, 0xffff"); e("buffer_load_dword v248, v13, s[20:23], 0 offen"); e("s_mov_b64 exec, -1")
    g.pstamp(5)
    e(f"s_waitcnt vmcnt({8 - o.w1share + (1 if o.x1share else 0)})")
    g.pstamp(6)
    e(f"v_lshlrev_b32 v{TM}, 16, v{TM}")
    for r in range(32): e(f"v_mov_b32 v{AV+r}, v{TM}")
    if o.cprio: e(f"s_setprio {o.cprio}")
    g.bar()
    g.stamp(1)
    emit(g, pro)
    for p in (0, 1):
        e("s_mov_b32 s64, 4")
        g.l.append(f".p2align {o.align}")
        g.lab(f"L_body{p}")
        emit(g, bodies[p])
        e(f"s_cbranch_scc1 L_body{p}")
    g.stamp(2)
    e("v_add_u32 v13, 16, v0")
    e("v_and_b32 v13, 63, v13")
    e("v_lshlrev_b32 v13, 2, v13")
    e(f"ds_bpermute_b32 v{TM}, v13, v{AU}")
    def pk(op, d, a, b, c=None):
        e(f"v_pk_{op}_f32 v[{d}:{d+1}], v[{a}:{a+1}], v[{b}:{b+1}]" + (f", v[{c}:{c+1}]" if c is not None else ""))
    T2 = TM + 2
    e("s_nop 4")
    for s in range(7):
        for h in (0, 2):
            pk("add", AP + 4 * s + h, AP + 4 * s + h, AV + 4 * s + h)
            pk("add", AV + 4 * s + h, AV + 4 * s + h, AU + 4 * s + h)
            pk("add", AP + 4 * s + h, AP + 4 * s + h, AU + 4 * s + 4 + h)
    for h in (0, 2):
        pk("add", AP + 28 + h, AP + 28 + h, AV + 28 + h)
        pk("add", AV + 28 + h, AV + 28 + h, AU + 28 + h)
    for r in range(3): e(f"v_add_f32 v{AP+28+r}, v{AP+28+r}, v{AU+r+1}")
    e("s_waitcnt lgkmcnt(0)")
    e(f"v_add_f32 v{AP+31}, v{AP+31}, v{TM}")
    e("s_mov_b32 exec_lo, 0"); e("s_mov_b32 exec_hi, 0xffff0000")
    for s in range(5, 8):
        e(f"v_mov_b32 v{AV+4*s+3}, 0"); e(f"v_mov_b32 v{AP+4*s+3}, 0")
    e("s_cmp_lg_u32 s53, 31")
    e("s_cbranch_scc1 L_nolast")
    e(f"v_mov_b32 v{AP+7}, 0")
    for s in range(2, 5):
        e(f"v_mov_b32 v{AV+4*s+3}, 0"); e(f"v_mov_b32 v{AP+4*s+3}, 0")
    g.lab("L_nolast")
    e("s_mov_b64 exec, -1")
    S0, Q0 = AU, AU + 8
    Y0 = AV
    for k in range(4):
        pk("mul", Q0 + 2 * k, Y0 + 2 * k, Y0 + 2 * k)
    for k in range(4):
        r = Y0 + 8 + 2 * k
        pk("add", S0 + 2 * k, r - 8, r); pk("fma", Q0 + 2 * k, r, r, Q0 + 2 * k)
    for m in range(2, 8):
        for k in range(4):
            r = Y0 + 8 * m + 2 * k
            pk("add", S0 + 2 * k, S0 + 2 * k, r); pk("fma", Q0 + 2 * k, r, r, Q0 + 2 * k)
    pk("add", S0, S0, S0 + 2); pk("add", Q0, Q0, Q0 + 2); pk("add", S0 + 4, S0 + 4, S0 + 6); pk("add", Q0 + 4, Q0 + 4, Q0 + 6)
    pk("add", S0, S0, S0 + 4); pk("add", Q0, Q0, Q0 + 4)
    e(f"v_add_f32 v14, v{S0}, v{S0+1}")
    e(f"v_add_f32 v15, v{Q0}, v{Q0+1}")
    e("s_lshl_b32 s56, s50, 7")
    e("s_add_u32 s56, s56, s49")
    e("v_permlane32_swap_b32 v14, v15")
    e("v_lshl_add_u32 v13, v0, 3, s56")
    e("v_add_f32 v14, v14, v15")
    e("v_mov_b32 v15, v14")
    e("s_nop 1")
    e("v_permlane16_swap_b32 v14, v15")
    e("v_add_f32 v14, v14, v15")
    e("v_mov_b32 v15, v14")
    e("s_nop 1")
    e("v_permlane32_swap_b32 v14, v15")
    e("v_and_b32 v15, 0x7fffffff, v15")
    e("s_mov_b64 exec, 0xffff")
    e(f"buffer_store_dwordx2 v[14:15], v13, s[32:35], 0 offen {o.st_flags}")
    e("s_mov_b64 exec, -1")
    g.stamp(3)
    e(f"v_mul_u32_u24 v13, {64*YP}, v12")
    e("s_lshl_b32 s56, s50, 6")
    e("v_lshl_add_u32 v11, v11, 2, s56")
    e("v_add_u32 v13, v13, v11")
    g.bar()
    for s in range(8):
        for ev in range(2):
            for r in range(4):
                e(f"ds_write_b32 v13, v{(AP if ev else AV)+4*s+r} offset:{(2*s+ev+16*r)*YP}")
    e("s_waitcnt lgkmcnt(0)")
    g.bar()
    g.stamp(4)
    e("s_branch L_final_rd")

    g.lab("L_helper")
    g.inhelper = True
    HP = Stream()
    HP.e("s_mov_b32 s64, 32768"); HP.e("s_mov_b32 s60, 2"); HP.e("s_mov_b32 s65, 128")
    HQ = Stream()
    HQ.e("buffer_load_ushort v114, v113, s[16:19], 0 offen", vm=("G", 0), keep=1)
    HQ.e("s_mov_b32 s16, s12"); HQ.e("s_mov_b32 s17, s13")
    HQ.e("buffer_load_ushort v115, v113, s[16:19], 0 offen", vm=("G", 0), keep=1)
    H0 = Stream()
    for n in range(o.r1, 9): x_one(H0, n, 0, ("X", 0), so="0")
    if o.bara: H0.e("s_barrier")
    H0.e("", need=[("X", 0)]); H0.e("s_barrier")
    H1a = Stream()
    for t in range(4): d_reads(H1a, t, 0)
    d_mfma(H1a, o); H1a.e("s_nop 7"); d_cvt(H1a)
    for k in range(o.npf0 if o.pf else 0):
        H1a.e("buffer_load_dword v116, v19, s[44:47], 0 offen", vm=("P", 0)); H1a.e("v_add_u32 v19, s63, v19")
    H1 = Stream()
    H1.e("s_barrier")
    SW = []
    n_ad, n_ag, n_bg = o.nad, o.nag, o.nbg
    for par in range(2):
        nb = par ^ 1
        a1, a2, b1, b2 = Stream(), Stream(), Stream(), Stream()
        seq = [(lambda S, n=n: x_one(S, n, nb, ("X", 1))) for n in range(9)] + [(lambda S, j=j: w_one(S, j, 0, ("W", 2))) for j in range(8)]
        seqb = [(lambda S, j=j: w_one(S, j, 1, ("W", 3))) for j in range(8)]
        for t in range(4): d_write(a1, t)
        for f in seq[:n_ad]: f(a1)
        a1.e("", need=[], lg=1); a1.e("s_barrier")
        for f in seq[n_ad:n_ag]: f(a1)
        a1.e("", need=[("W", 1)]); a1.e("s_barrier")
        for f in seq[n_ag:o.naa]: f(a2)
        if o.pf and o.sitea:
            a2.e("s_mov_b32 s46, s9"); a2.e("buffer_load_dword v116, v19, s[44:47], 0 offen", vm=("P", 0))
            a2.e("s_mov_b32 s9, 0"); a2.e("s_mov_b32 s46, s8")
        for t in ("s_add_u32 s65, s65, 128", "s_add_u32 s61, s61, 1", "s_cmp_ge_u32 s61, 7", "s_cselect_b32 s22, 0, s22"): a2.e(t)
        a2.e("", need=[("X", 1)]); a2.e("s_barrier")
        restb = seq[o.naa:] + seqb
        for t in range(4): d_reads(b1, t, nb)
        for f in restb[:n_bg]: f(b1)
        b1.e("", need=[("W", 2)]); b1.e("s_barrier")
        for f in restb[n_bg:]: f(b2)
        if o.pf:
            b2.e("buffer_load_dword v116, v19, s[44:47], 0 offen", vm=("P", 0)); b2.e("v_add_u32 v19, s63, v19"); b2.e("s_mov_b32 s46, s8")
        if not o.no_atomic:
            b2.e("s_cmp_lg_u32 s61, s62"); b2.e(f"s_cbranch_scc1 L_nocnt{par}")
            b2.e("s_mov_b64 exec, 1"); b2.e("buffer_atomic_add v118, v117, s[36:39], 0 offen sc1"); b2.e("s_mov_b64 exec, -1")
            b2.e(f"L_nocnt{par}:")
        d_mfma(b2, o); b2.e("s_nop 7"); d_cvt(b2)
        if o.drain: b2.e("s_waitcnt vmcnt(0)")
        b2.e("s_barrier")
        SW.append((a1, a2, b1, b2))
    parts = [(HX0, dict(X=0)), (HP, dict(X=0, W=0)), (H0, dict(X=0)), (H1a, dict(P=0)), (HQ, dict(G=0)), (H1, dict(P=0))]
    for st in range(8):
        for k, S in enumerate(SW[st & 1]):
            if not (st == 7 and k == 3): parts.append((S, dict(X=st, W=2 * st, P=0)))
    solve_vm(parts)
    g.pstamp(4)
    emit_stream(g, HP)
    w_voff(g, "s50")
    for t in w_srd(): e(t)
    e("s_mov_b32 s40, s24"); e("s_mov_b32 s41, s25"); e("s_mov_b32 s42, s26"); e("s_mov_b32 s43, 0x20000")
    late_srds()
    e("s_mov_b32 s16, s10"); e("s_mov_b32 s17, s11"); e("s_mov_b32 s18, 512"); e("s_mov_b32 s19, 0x20000")
    e("s_mov_b32 s47, 0x20000")
    e("v_and_b32 v112, 31, v0")
    e("v_lshrrev_b32 v113, 5, v0")
    e("v_lshl_add_u32 v112, v112, 1, v113")
    e("v_lshl_add_u32 v113, v112, 1, s51")
    if o.pf:
        e("s_mov_b32 s44, s20"); e("s_mov_b32 s45, s21"); e("s_mov_b32 s46, s22")
        e("s_cmp_eq_u32 s50, 0"); e("s_cselect_b32 s57, 128, 0"); e("s_cselect_b32 s8, s46, 0")
        e("s_lshl_b32 s56, s54, 16"); e("s_add_u32 s56, s56, s57"); e(f"s_add_u32 s56, s56, {128 * (o.pfx0 - 1)}")
        e("v_lshl_add_u32 v19, v0, 10, s56")
        e("s_mov_b32 s63, 128")
        e("s_bitcmp0_b32 s50, 0"); e("s_cbranch_scc1 L_pfj")
        e("s_mov_b32 s44, s6"); e("s_mov_b32 s45, s7")
        e("s_cmp_eq_u32 s50, 1"); e(f"s_cselect_b32 s46, {W_BYTES}, 0"); e("s_mov_b32 s8, s46")
        e("s_lshr_b32 s57, s2, 3")
        e("s_lshr_b32 s56, s57, 2"); e("s_lshl_b32 s56, s56, 18")
        e("s_and_b32 s57, s57, 3"); e("s_lshl_b32 s57, s57, 13")
        e("s_add_u32 s56, s56, s57"); e(f"s_add_u32 s56, s56, {32768 * o.pfw0}")
        e("v_lshl_add_u32 v19, v0, 7, s56")
        e("s_mov_b32 s63, 32768")
        g.lab("L_pfj")
        e("s_cmp_eq_u32 s50, 2"); e("s_cselect_b32 s9, s46, 0")
    e(f"s_mov_b32 s4, 0x{STAB & 0xffffffff:08x}"); e(f"s_mov_b32 s5, 0x{STAB >> 32:08x}")
    e("v_and_b32 v20, 60, v0")
    e("v_lshrrev_b64 v[20:21], v20, s[4:5]")
    e("v_and_b32 v20, 15, v20")
    e("v_and_b32 v26, 15, v0")
    e("v_lshlrev_b32 v28, 2, v26")
    e("v_lshrrev_b64 v[28:29], v28, s[4:5]")
    e("v_and_b32 v28, 15, v28")
    e(f"s_mov_b32 s4, 0x{FTAB & 0xffffffff:08x}"); e(f"s_mov_b32 s5, 0x{FTAB >> 32:08x}")
    def swz(dst, idx, q):
        e(f"v_and_b32 v22, 15, v{idx}")
        e("v_lshlrev_b32 v22, 2, v22")
        e("v_lshrrev_b64 v[22:23], v22, s[4:5]")
        e("v_and_b32 v22, 7, v22")
        e(f"v_xor_b32 v22, v22, v{q}")
        e("v_lshlrev_b32 v22, 4, v22")
        e(f"v_lshl_add_u32 v{dst}, v{idx}, 7, v22")
    e("v_and_b32 v21, 3, v0")
    e("v_lshrrev_b32 v27, 4, v0")
    swz(30, 20, 21)
    swz(31, 28, 27)
    e("s_lshl_b32 s56, s50, 12")
    e(f"s_add_u32 s57, s56, {OB}")
    e(f"v_add_u32 v{TO}, s57, v30")
    e(f"s_add_u32 s57, s56, {2048+128}")
    e(f"v_add_u32 v{TE}, s57, v30"); e(f"v_add_u32 v{TE+1}, 2048, v{TE}")
    e(f"s_add_u32 s57, s56, {DB}")
    e(f"v_add_u32 v{WD}, s57, v31")
    e("s_cmp_lg_u32 s50, 3"); e("s_cbranch_scc1 L_nowrap")
    e("v_add_u32 v20, 1, v20")
    swz(TE + 1, 20, 21)
    g.lab("L_nowrap")
    e(f"v_xor_b32 v{TO+1}, 64, v{TO}"); e(f"v_xor_b32 v{TE+2}, 64, v{TE}"); e(f"v_xor_b32 v{TE+3}, 64, v{TE+1}")
    e(f"v_xor_b32 v{WD+1}, 64, v{WD}")
    e("v_and_b32 v20, 1, v0"); e("v_lshlrev_b32 v20, 4, v20")
    e("s_movk_i32 s56, 0x3f80"); e("v_lshlrev_b32 v20, v20, s56")
    e("v_bfe_u32 v21, v0, 1, 3"); e("v_lshlrev_b32 v27, 1, v27")
    for r in range(2):
        if r: e("v_add_u32 v27, 1, v27")
        e("v_cmp_eq_u32 vcc, v21, v27"); e("s_nop 1")
        e(f"v_cndmask_b32 v{HS+r}, 0, v20, vcc")
        e(f"v_lshlrev_b32 v23, 3, v{HS+r}")
        e(f"v_and_b32 v23, 0x80008000, v23")
        e(f"v_or_b32 v{HS+2+r}, v{HS+r}, v23")
    e("s_mov_b32 s61, 0")
    if o.hprio: e(f"s_setprio {o.hprio}")
    g.pstamp(7)
    emit_stream(g, H0)
    g.stamp(1)
    emit_stream(g, H1a)
    emit_stream(g, HQ)
    e("s_mov_b32 s62, 99")
    e("v_mov_b32 v117, 0"); e("v_mov_b32 v118, 0")
    e("s_cmp_lg_u32 s50, 3"); e("s_cbranch_scc1 L_noclean")
    e("v_lshl_add_u32 v117, v0, 3, s49")
    e("v_mov_b32 v118, -1"); e("v_mov_b32 v119, -1")
    e("buffer_store_dwordx2 v[118:119], v117, s[32:35], 0 offen sc1")
    e("s_and_b32 s62, s2, 3"); e("s_add_u32 s62, s62, 2")
    e("s_lshl_b32 s56, s2, 5"); e("s_and_b32 s56, s56, 128")
    e("v_mov_b32 v117, s56"); e("v_mov_b32 v118, 1")
    g.lab("L_noclean")
    emit_stream(g, H1)
    g.lab("L_hloop")
    for par in range(2):
        for k, S in enumerate(SW[par]):
            if o.hstamps and k in (1, 3):
                for r in range(70, 100, 2): e(f"s_mov_b64 s[{r}:{r+1}], s[{r+2}:{r+3}]")
                e("s_memtime s[100:101]"); e("s_waitcnt lgkmcnt(0)")
            if par == 1 and k == 3:
                e("s_cmp_eq_u32 s61, 8"); e("s_cbranch_scc1 L_hdone")
            emit_stream(g, S)
    e("s_branch L_hloop")
    g.lab("L_hdone")
    g.stamp(2)
    e("s_cmp_lg_u32 s3, 4")
    e("s_cbranch_scc1 L_hrest")
    e("v_and_b32 v8, 1, v0"); e("v_lshlrev_b32 v8, 7, v8")
    e("buffer_load_dword v7, v8, s[36:39], 0 offen sc1")
    e("v_lshl_add_u32 v6, v0, 4, s48")
    e("v_mov_b32 v2, v112")
    e("s_movk_i32 s61, 0x1000"); e("s_movk_i32 s62, 0x2000"); e("s_movk_i32 s63, 0x3000")
    e("s_waitcnt vmcnt(1)")
    e("v_lshlrev_b32 v4, 16, v114"); e("v_lshlrev_b32 v5, 16, v115")
    GR = 128
    def gather_loads():
        for u in range(16):
            so = ["0", "s61", "s62", "s63"][u >> 2]
            e(f"buffer_load_dwordx4 v[{GR+4*u}:{GR+4*u+3}], v6, s[32:35], {so} offen offset:{(u&3)*1024} {o.ld_flags}")
    g.bar()
    e("s_mov_b32 s60, 0")
    g.lab("L_chk")
    e("s_waitcnt vmcnt(0)")
    e(f"v_cmp_gt_u32 vcc, {0 if o.no_atomic else 0x80}, v7"); e("s_cbranch_vccz L_chk_ok")
    e("s_add_u32 s60, s60, 1"); e("s_cmp_ge_u32 s60, 0x100000"); e("s_cbranch_scc1 L_chk_ok")
    e("buffer_load_dword v7, v8, s[36:39], 0 offen sc1")
    e("s_branch L_chk")
    g.lab("L_chk_ok")
    gather_loads()
    g.bar()
    def final_reads():
        e("v_lshrrev_b32 v20, 3, v0")
        e("s_lshl_b32 s56, s3, 5")
        e("v_add_u32 v20, s56, v20")
        e("v_and_b32 v21, 7, v0")
        e(f"v_mul_u32_u24 v22, {YP}, v20")
        e("v_lshl_add_u32 v22, v21, 5, v22")
        for rg in range(4):
            e(f"ds_read_b128 v[{64+8*rg}:{64+8*rg+3}], v22 offset:{rg*8*YP}")
            e(f"ds_read_b128 v[{64+8*rg+4}:{64+8*rg+7}], v22 offset:{rg*8*YP+16}")
    final_reads()
    e("s_mov_b32 s60, 0")
    g.lab("L_poll")
    e("s_waitcnt vmcnt(0)")
    e(f"v_or_b32 v14, v{GR+1}, v{GR+3}")
    for u in range(1, 16): e(f"v_or3_b32 v14, v14, v{GR+4*u+1}, v{GR+4*u+3}")
    e("v_cmp_gt_i32 vcc, 0, v14")
    e("s_cbranch_vccz L_poll_ok")
    e("s_add_u32 s60, s60, 1"); e("s_cmp_ge_u32 s60, 0x40000"); e("s_cbranch_scc1 L_poll_ok")
    gather_loads()
    e("s_branch L_poll")
    g.lab("L_poll_ok")
    g.stamp(4)
    for u in range(2, 16):
        d = GR + 4 * (u & 1)
        pk("add", d, d, GR + 4 * u); pk("add", d + 2, d + 2, GR + 4 * u + 2)
    pk("add", GR, GR, GR + 4); pk("add", GR + 2, GR + 2, GR + 6)
    e("s_mov_b32 s61, 0x%08x" % f2u(1.0 / L))
    e("s_nop 0")
    e(f"v_permlane32_swap_b32 v{GR}, v{GR+2}")
    e(f"v_permlane32_swap_b32 v{GR+1}, v{GR+3}")
    e(f"v_add_f32 v10, v{GR}, v{GR+2}")
    e(f"v_add_f32 v11, v{GR+1}, v{GR+3}")
    e("v_mul_f32 v10, s61, v10")
    e("v_mul_f32 v11, s61, v11")
    e("v_fma_f32 v11, -v10, v10, v11")
    e("v_max_f32 v11, 0, v11")
    e("v_add_f32 v11, 0x%08x, v11" % f2u(1e-5))
    e("v_rsq_f32 v11, v11")
    e("v_lshlrev_b32 v12, 2, v2")
    e(f"v_add_u32 v12, {MISC}, v12")
    e("v_mul_f32 v11, v4, v11")
    e("v_fma_f32 v10, -v10, v11, v5")
    e("ds_write_b32 v12, v11")
    e("ds_write_b32 v12, v10 offset:256")
    e("s_branch L_final")
    g.lab("L_hrest")
    e("s_waitcnt vmcnt(0)")
    g.bar()
    g.bar()
    g.lab("L_final_rd")
    final_reads()
    g.lab("L_final")
    Y = 64
    e("v_lshlrev_b32 v23, 9, v20")
    e("v_lshl_add_u32 v23, v21, 4, v23")
    e("v_add_u32 v23, s51, v23")
    e("v_lshlrev_b32 v24, 5, v21")
    e(f"v_add_u32 v24, {MISC}, v24")
    K1 = -2.0 * 0.7978845608028654 * 1.4426950408889634
    K2 = K1 * 0.044715
    e("s_mov_b32 s60, 0x%08x" % f2u(K1)); e("s_mov_b32 s61, 0x%08x" % f2u(K1))
    e("v_mov_b32 v26, 0x%08x" % f2u(K2)); e("v_mov_b32 v27, 0x%08x" % f2u(K2))
    e("s_setprio 0")
    e("s_waitcnt lgkmcnt(0)")
    g.bar()
    g.stamp(5)
    e("ds_read_b128 v[32:35], v24"); e("ds_read_b128 v[40:43], v24 offset:256")
    e("ds_read_b128 v[36:39], v24 offset:16"); e("ds_read_b128 v[44:47], v24 offset:272")
    e("s_waitcnt lgkmcnt(0)")
    for rg in range(4):
        y = Y + 8 * rg; P = 96 + 8 * rg
        for k in range(4): pk("fma", y + 2 * k, y + 2 * k, 32 + 2 * k, 40 + 2 * k)
        for k in range(4): pk("mul", P + 2 * k, y + 2 * k, y + 2 * k)
        for k in range(4): e(f"v_pk_fma_f32 v[{P+2*k}:{P+2*k+1}], v[{P+2*k}:{P+2*k+1}], v[26:27], s[60:61]")
        for k in range(4): pk("mul", P + 2 * k, P + 2 * k, y + 2 * k)
        for k in range(8): e(f"v_exp_f32 v{P+k}, v{P+k}")
        for k in range(4): e(f"v_pk_add_f32 v[{P+2*k}:{P+2*k+1}], v[{P+2*k}:{P+2*k+1}], 1.0 op_sel_hi:[1,0]")
        for k in range(8): e(f"v_rcp_f32 v{P+k}, v{P+k}")
        for k in range(4): pk("mul", y + 2 * k, y + 2 * k, P + 2 * k)
        for k in range(4): e(f"v_cvt_pk_bf16_f32 v{48+4*rg+k}, v{y+2*k}, v{y+2*k+1}")
        e(f"buffer_store_dwordx4 v[{48+4*rg}:{51+4*rg}], v23, s[28:31], 0 offen {o.out_flags}")
        if rg < 3: e("v_add_u32 v23, 4096, v23")
    g.stamp(6)
    if o.stamps:
        e("s_waitcnt vmcnt(0)"); g.stamp(7)
    g.stamp_flush()
    g.lab("L_end")
    e("s_endpgm")
    g.l.append(f""".section .rodata,"a"
.p2align 6
.amdhsa_kernel {KN}
  .amdhsa_next_free_vgpr 256
  .amdhsa_next_free_sgpr 102
  .amdhsa_accum_offset 256
  .amdhsa_group_segment_fixed_size 0
  .amdhsa_kernarg_size 64
  .amdhsa_user_sgpr_count 2
  .amdhsa_user_sgpr_kernarg_segment_ptr 1
  .amdhsa_system_sgpr_workgroup_id_x 1
.end_amdhsa_kernel""")
    return "\n".join(g.l) + "\n"

def parser():
    ap = argparse.ArgumentParser()
    ap.add_argument("-o", default="k2.s")
    ap.add_argument("--stamps", action="store_true")
    for f in ("no-mfma", "no-read", "no-dma", "no-valu", "no-hvalu", "no-hwr", "no-mask", "no-xld", "no-hrd", "no-hw", "wfirst", "no-hwait", "hstamps", "no-atomic", "pstamps"): ap.add_argument("--" + f, action="store_true")
    ap.add_argument("--gammaoff", type=int, default=1)
    ap.add_argument("--alpha", type=int, default=20)
    ap.add_argument("--npe", type=int, default=7)
    ap.add_argument("--npre", type=int, default=2)
    ap.add_argument("--cdummy", type=int, default=0)
    ap.add_argument("--cap", type=int, default=2)
    ap.add_argument("--wpos", default="")
    ap.add_argument("--pfslot", type=int, default=44)
    ap.add_argument("--pfw", type=int, default=2)
    ap.add_argument("--pfx", type=int, default=2)
    ap.add_argument("--pfcode", type=int, default=6)
    ap.add_argument("--pfw0", type=int, default=2)
    ap.add_argument("--pfx0", type=int, default=3)
    ap.add_argument("--pfhalf", type=int, default=0)
    ap.add_argument("--delta", type=int, default=46)
    ap.add_argument("--dshift", type=int, default=2)
    ap.add_argument("--nd", type=int, default=2)
    ap.add_argument("--nad", type=int, default=2)
    ap.add_argument("--nag", type=int, default=6)
    ap.add_argument("--naa", type=int, default=17)
    ap.add_argument("--nbg", type=int, default=3)
    ap.add_argument("--mprio", type=int, default=1)
    ap.add_argument("--drain", type=int, default=0)
    ap.add_argument("--x1early", type=int, default=1)
    ap.add_argument("--align", type=int, default=3)
    ap.add_argument("--w1c", type=int, default=0)
    ap.add_argument("--npf0", type=int, default=0)
    ap.add_argument("--cpf", type=int, default=1)
    ap.add_argument("--rot", type=int, default=1)
    ap.add_argument("--x1share", type=int, default=1)
    ap.add_argument("--r1", type=int, default=4)
    ap.add_argument("--bara", type=int, default=1)
    ap.add_argument("--w1share", type=int, default=1)
    ap.add_argument("--sitea", type=int, default=1)
    ap.add_argument("--vmargin", type=int, default=6)
    ap.add_argument("--lead", type=int, default=24)
    ap.add_argument("--wstep", type=int, default=3)
    ap.add_argument("--nwa", type=int, default=1)
    ap.add_argument("--nwb", type=int, default=5)
    ap.add_argument("--nb", type=int, default=16)
    ap.add_argument("--quiet", type=int, default=10)
    ap.add_argument("--nx1", type=int, default=5)
    ap.add_argument("--amargin", type=int, default=8)
    ap.add_argument("--minlat", type=int, default=8)
    ap.add_argument("--waitahead", type=int, default=12)
    ap.add_argument("--cprio", type=int, default=0)
    ap.add_argument("--hprio", type=int, default=0)
    ap.add_argument("--pf", type=int, default=1)
    ap.add_argument("--st-flags", default="sc1")
    ap.add_argument("--ld-flags", default="sc1")
    ap.add_argument("--out-flags", default="sc0 sc1")
    return ap
if __name__ == "__main__":
    o = parser().parse_args()
    open(o.o, "w").write(gen(o))
```

```python
import argparse, struct
KN = "standalone__self_sup_conv_stem_hubert__speech_kernel"
X_BYTES = 2 * 16000 * 512
W_BYTES = 15 * 256 * 512
L = 7993
TS = 250
XBUF = 257 * 128
OB = 129 * 128
DB = 2 * XBUF
WB = DB + 131 * 128
MISC = WB + 65536
def clsE(c): return (16 * c + (c > 0)) * 128
def clsO(c): return OB + 16 * c * 128
def clsD(c): return 16 * c * 128
SIG = [1, 3, 9, 11, 4, 12, 10, 14, 5, 7, 13, 15, 0, 2, 8, 6]
STAB = sum(v << (4 * i) for i, v in enumerate(SIG))
LDS = MISC + 512
FTAB = 0x7762574435221100
YP = 272
def f2u(x): return struct.unpack("<I", struct.pack("<f", x))[0]
def ftab(i): return (FTAB >> (4 * (i & 15))) & 7

AU, AV, AP = 16, 48, 80
FR, BE, BO, CR, TM, PFD = 112, 188, 204, 220, 236, 244
SLOT = {"E": [0, 1, 2, 15, 16, 17, 18, 7, 8, 9, 10], "O": [0, 1, 2, 3, 4, 5, 6, 11, 12, 13, 14], "D": list(range(11))}
G2A = {"U": "E", "V": "O", "P": "D"}
def freg(arr, u): return FR + 4 * SLOT[arr][u]
def rng(b, n=4): return f"v[{b}:{b+n-1}]"

class G:
    def __init__(self, o):
        self.o = o; self.l = []; self.inhelper = False
    def e(self, s): self.l.append("    " + s)
    def lab(self, s): self.l.append(s + ":")
    def c(self, s): self.l.append("    ; " + s)
    def bar(self):
        self.e("s_barrier")
    def pstamp(self, p):
        if self.o.pstamps: self.stamp(p, True)
    def stamp(self, p, force=False):
        if not self.o.stamps or (self.o.hstamps and self.inhelper): return
        if self.o.pstamps and p > 2 and not force: return
        b = 70 + 4 * p
        self.e(f"s_memrealtime s[{b}:{b+1}]"); self.e(f"s_memtime s[{b+2}:{b+3}]"); self.e("s_waitcnt lgkmcnt(0)")
    def stamp_init(self):
        if not self.o.stamps: return
        for r in range(70, 102, 2): self.e(f"s_mov_b64 s[{r}:{r+1}], 0")
    def stamp_flush(self):
        if not self.o.stamps: return
        e = self.e
        if self.o.amp:
            a, b, K, wv, wg = [int(x) for x in self.o.amp.split(",")]
            e(f"s_cmp_lg_u32 s3, {wv}"); e("s_cbranch_scc1 L_end")
            if wg >= 0:
                e(f"s_cmp_lg_u32 s2, {wg}"); e("s_cbranch_scc1 L_end")
            e(f"s_sub_u32 s56, s{70+4*b}, s{70+4*a}"); e(f"s_mul_i32 s56, s56, {K}")
            e("s_memrealtime s[60:61]"); e("s_waitcnt lgkmcnt(0)")
            self.lab("L_amp")
            e("s_memrealtime s[62:63]"); e("s_waitcnt lgkmcnt(0)")
            e("s_sub_u32 s57, s62, s60"); e("s_cmp_lt_u32 s57, s56"); e("s_cbranch_scc1 L_amp")
            return
        e("s_waitcnt vmcnt(0) lgkmcnt(0)")
        e("s_lshl_b32 s56, s2, 3"); e("s_add_u32 s56, s56, s3"); e("s_lshl_b32 s56, s56, 7"); e("s_add_u32 s56, s56, 0x100000")
        e("v_mov_b32 v10, s56"); e("s_mov_b64 exec, 1")
        for p in range(8):
            b = 70 + 4 * p
            for k in range(4): e(f"v_mov_b32 v{12+k}, s{b+k}")
            e(f"buffer_store_dwordx4 v[12:15], v10, s[32:35], 0 offen offset:{16*p}"); e("s_waitcnt vmcnt(0)")

def umajor(K): return [(u - s_, s_, u) for u in range(7 + K) for s_ in range(min(u, 7), -1, -1) if 0 <= u - s_ < K]

def sub_ops(dst, a, b, t):
    return [(f"v_lshlrev_b32 v{t}, 16, v{a}", [a], [t]), (f"v_lshlrev_b32 v{t+2}, 16, v{b}", [b], [t + 2]),
            (f"v_and_b32 v{t+1}, s58, v{a}", [a], [t + 1]), (f"v_and_b32 v{t+3}, s58, v{b}", [b], [t + 3]),
            (f"v_sub_f32 v{t}, v{t}, v{t+2}", [t, t + 2], [t]), (f"v_sub_f32 v{t+1}, v{t+1}, v{t+3}", [t + 1, t + 3], [t + 1]),
            (f"v_cvt_pk_bf16_f32 v{dst}, v{t}, v{t+1}", [t, t + 1], [dst])]
def chain(units):
    out = []
    for u in units:
        if out and len(u) == 7:
            last = out.pop(); out += [u[0], last] + u[1:]
        else: out += u
    return out
def cunit(k, r): return sub_ops(CR + 4 * k + r, BE + 4 * k + r, BO + 4 * k + r, TM + 4 * (r & 1))

class Period:
    def __init__(self, p, cc, o):
        self.p = p
        KV = 4 - p
        N = self.N = 96 - 8 * p
        P0 = self.P0 = 64 - 8 * p
        self.alpha = o.alpha; self.gamma = P0 + o.gammaoff
        self.delta = (o.delta - (o.dshift if p else 0)) if cc == 0 else -1
        mf = []
        for k, s, u in umajor(4): mf.append(("U", k, s, u))
        for k, s, u in umajor(KV): mf.append(("V", k, s, u))
        for k in range(4):
            for s in range(8): mf.append(("P", k, s, s + k))
        assert len(mf) == N
        self.mf = mf
        first = {}; last = {}
        for i, (g, k, s, u) in enumerate(mf):
            for key in ((g, "F", u), (g, "B", k)):
                first.setdefault(key, i); last[key] = i
        c0s = self.gamma + 4 + o.minlat
        npre = o.npre
        if p == 0: win = {1: (10, 60), 2: (28, 70), 3: (44, N - 12)}
        else: win = {1: (10, 60), 2: (30, 70), 3: (44, N - 12)}
        valu = []
        valu.append((0, 30, chain([cunit(0, r) for r in range(npre, 4)]), 0))
        for k in (1, 2, 3):
            if p == 1 and k == 3:
                ops = [(f"v_mov_b32 v{CR+12+r}, v{BE+12+r}", [BE + 12 + r], [CR + 12 + r]) for r in range(4)]
            else:
                ops = chain([cunit(k, r) for r in range(4)])
            valu.append((win[k][0], win[k][1], ops, 0))
        valu.append((c0s, N, chain([cunit(0, r) for r in range(npre)]), 1))
        self.npre = npre
        ld = []
        lim = self.alpha - o.amargin
        lim2 = self.gamma - o.amargin
        def free_after(arr, u, limit):
            ts = [i for i, (g_, k_, s_, u_) in enumerate(mf) if i < limit and SLOT[G2A[g_]][u_] == SLOT[arr][u]]
            return max(ts) if ts else 0
        npe = o.npe
        for u in range(npe, 11): ld.append((("E", u), 0, 0, first[("U", "F", u)], lim2))
        for k in range(2, KV):
            for h in (0, 1): ld.append((("Bo", k, h), 0, 0, min(win[k][0], first[("V", "B", k)]), lim))
        for u in range(7 + KV):
            ld.append((("O", u), 0, free_after("O", u, 32), first[("V", "F", u)], self.alpha if cc == 0 else lim2))
        for u in range(11):
            ld.append((("D", u), 0, max(self.delta, 1, free_after("D", u, P0)), first[("P", "F", u)], N - 1))
        b = self.gamma
        for h in (0, 1):
            ld.append((("Be", 0, h), 1, b, c0s, N - 1)); ld.append((("Bo", 0, h), 1, b, c0s, N - 1))
            ld.append((("Be", 1, h), 1, b, N + first[("U", "B", 1)], N - 1))
            ld.append((("Bo", 1, h), 1, b, N + 10, N - 1))
            ld.append((("Be", 2, h), 1, max(b, win[2][1]), N + first[("U", "B", 2)], N - 1))
            ld.append((("Be", 3, h), 1, max(b, win[3][1]), N + first[("U", "B", 3)], N - 1))
        for u in range(npe): ld.append((("E", u), 1, max(b, free_after("E", u, N)), N + first[("U", "F", u)], N - 1))
        slots = [[] for _ in range(N)]
        pend = list(ld)
        def dl(x): return min(x[3], x[4] + o.minlat)
        for t in range(N):
            av = [x for x in pend if x[2] <= t and dl(x) - t <= o.lead and not (self.alpha < t < self.delta)]
            if not av: continue
            x = min(av, key=lambda x: (dl(x), ld.index(x)))
            pend.remove(x)
            assert t <= x[4], (p, x, t)
            assert x[3] - t >= o.minlat, (p, x, t)
            slots[t].append(("ld", x[0], x[1]))
        assert not pend, pend
        self.slots = slots
        self.valu = valu
        self.pre = [it for t in range(N) for it in slots[t] if it[2] == 1]

def ld_dst(name):
    if name[0] in "EOD": return list(range(freg(*name), freg(*name) + 4))
    base = BE if name[0] == "Be" else BO
    r = base + 4 * name[1] + 2 * name[2]
    return [r, r + 1]
def ld_text(name, cc):
    if name[0] in "EOD":
        u = name[1]; a = u >> 3
        if name[0] == "D": return f"ds_read_b128 {rng(freg(*name))}, v{5 + a + 2*cc} offset:{clsD(u & 7)}"
        return f"ds_read_b128 {rng(freg(*name))}, v{1 + a + 2*cc} offset:{(clsE if name[0] == 'E' else clsO)(u & 7)}"
    d = ld_dst(name)
    j = 2 * name[1] + (name[0] == "Bo")
    return f"ds_read_b64_tr_b16 v[{d[0]}:{d[1]}], v9 offset:{cc * 32768 + j * 4096 + name[2] * 512}"

def build_bodies(o):
    per = {(p, cc): Period(p, cc, o) for p in (0, 1) for cc in (0, 1)}
    bodies = {}
    for p in (0, 1):
        body = []
        for cc in (0, 1):
            P = per[(p, cc)]
            vs = [[] for _ in range(P.N)]
            extra = [[] for _ in range(P.N)]
            if o.cdummy:
                txt = {1: f"ds_write_b128 v10, v[{PFD}:{PFD+3}]", 2: f"ds_write_b64 v10, v[{PFD}:{PFD+1}]", 3: f"ds_write_b32 v10, v{PFD}",
                       4: f"ds_write_b64 v10, v[{PFD}:{PFD+1}]", 5: f"ds_write_b32 v10, v{PFD}", 6: f"ds_write_addtid_b32 v{PFD}"}[o.cdummy]
                ts = {4: (10, 12, 50, 52), 5: (10, 11, 12, 13, 50, 51, 52, 53), 6: (10, 11, 12, 13, 50, 51, 52, 53)}.get(o.cdummy, (10, 50))
                for t in ts: extra[t].append(dict(k="l", name=("Z", 0), rel=0, cc=cc, wr=[], t=txt + f" offset:{1024*(t&3)}"))
            if cc == 1:
                extra[P.gamma - 9].append(dict(k="x", t="s_sub_u32 s62, 0, s62"))
                for q in range(4): extra[P.gamma - 8 + 2 * q].append(dict(k="x", t=f"v_add_u32 v{1+q}, s62, v{1+q}"))
                extra[P.N - 3].append(dict(k="x", t="s_sub_u32 s64, s64, 1"))
                extra[P.N - 2].append(dict(k="x", t="s_cmp_lg_u32 s64, 0"))
            stream = [(a, b, op, rel) for (a, b, ops, rel) in P.valu for op in ops]
            tend = P.N - o.vmargin
            pos = 0
            for t in range(P.N):
                cap = o.cap - len(P.slots[t]) - len(extra[t]) - (1 if t in (P.alpha, P.gamma, P.delta) else 0)
                cap = min(cap, 2)
                want = -(-(t + 1) * len(stream) // tend)
                while cap > 0 and pos < min(want, len(stream)) and stream[pos][0] <= t:
                    a, b, (tx, rd, wr), rel = stream[pos]
                    assert t < b, ("valu late", p, t, stream[pos])
                    vs[t].append(dict(k="v", t=tx, rd=rd, wr=wr, rel=rel)); pos += 1; cap -= 1
            assert pos == len(stream), ("valu overflow", p, pos)
            for t, (g, k, s, u) in enumerate(P.mf):
                acc = {"U": AU, "V": AV, "P": AP}[g] + 4 * s
                bop = {"U": BE, "V": BO, "P": CR}[g] + 4 * k
                body.append(dict(k="m", t=f"v_mfma_f32_16x16x32_bf16 {rng(acc)}, {rng(freg(G2A[g], u))}, {rng(bop)}, {rng(acc)}",
                                 g=g, kk=k, u=u, cc=cc, slot=t, rd=list(range(freg(G2A[g], u), freg(G2A[g], u) + 4)) + list(range(bop, bop + 4))))
                if t == P.delta: body.append(dict(k="b", which="d", cc=cc, t="s_barrier"))
                if t == P.gamma and cc == 0 and p == 0: body.append(dict(k="x", t="s_waitcnt vmcnt(0)"))
                if t == P.gamma: body.append(dict(k="b", which="g", cc=cc, t="s_barrier"))
                for it in P.slots[t]:
                    body.append(dict(k="l", name=it[1], rel=it[2], cc=cc, t=ld_text(it[1], cc ^ it[2]), wr=ld_dst(it[1])))
                if t == P.alpha: body.append(dict(k="b", which="a", cc=cc, t="s_barrier"))
                body += vs[t]; body += extra[t]
        bodies[p] = body
    pro = [dict(k="l", name=it[1], rel=1, cc=1, t=ld_text(it[1], 0), wr=ld_dst(it[1])) for it in per[(0, 1)].pre]
    pro += [dict(k="v", t=tx, rd=rd, wr=wr, rel=1) for tx, rd, wr in chain([cunit(0, r) for r in range(o.npre)])]
    pro.append(dict(k="x", t="s_nop 0", wait=0))
    def run(final):
        changed = False
        issued = []
        mark = -1
        tag = {}
        now = 0
        seq = [(pro, -1)] + [(bodies[st >> 2], st) for st in range(8)]
        for code, st in seq:
            for ins in code:
                i = 2 * st + ins.get("cc", 0) if st >= 0 else -1
                if ins["k"] == "v" and st >= 0: i = cur
                if ins["k"] == "m": cur = i; now += 1
                need = -1
                if ins["k"] in "mv":
                    for r in ins["rd"]:
                        if r in tag: need = max(need, tag[r][1])
                if ins["k"] == "b":
                    kinds = {"a": ("Be", "Bo", "D"), "g": ("E", "O"), "d": ()}[ins["which"]]
                    for j, (x, sc, _) in enumerate(issued):
                        if x["name"][0] in kinds and sc <= (i if x["name"][0] != "D" else i - 1): need = max(need, j)
                if "wait" in ins: mark = max(mark, len(issued) - 1 - ins["wait"])
                if need > mark:
                    assert not final
                    n = len(issued) - 1 - need
                    recent = sum(1 for (_, _, tt) in issued if tt > now - o.waitahead)
                    n = min(n, recent, 15)
                    ins["wait"] = min(n, ins.get("wait", 99)); changed = True
                    mark = max(mark, len(issued) - 1 - ins["wait"])
                if ins["k"] == "l":
                    sc = i + ins["rel"]
                    issued.append((ins, sc, now))
                    for q, r in enumerate(ins["wr"]): tag[r] = ((ins["name"], sc, q), len(issued) - 1)
                elif ins["k"] == "v":
                    sc = i + ins["rel"]
                    for r in ins["rd"]:
                        if BE <= r < BO + 16:
                            nm, s2, q = tag[r][0]
                            base = BE if r < BO else BO
                            assert nm == (("Be" if r < BO else "Bo"), (r - base) >> 2, ((r - base) >> 1) & 1) and s2 == sc, (ins, tag[r], sc)
                    for r in ins["wr"]: tag[r] = (("val", sc, now), -1)
                elif ins["k"] == "m":
                    arr = {"U": "E", "V": "O", "P": "D"}[ins["g"]]
                    for q, r in enumerate(ins["rd"][:4]): assert tag[r][0] == ((arr, ins["u"]), i, q), (ins, tag[r], i)
                    for q, r in enumerate(ins["rd"][4:]):
                        if ins["g"] == "P": assert tag[r][0][0] == "val" and tag[r][0][1] == i and tag[r][0][2] < now - 1, (ins, tag[r])
                        else: assert tag[r][0][:2] == ((("Be" if ins["g"] == "U" else "Bo"), ins["kk"], q >> 1), i), (ins, tag[r], i)
        return changed
    while run(False): pass
    run(True)
    return pro, bodies

def emit(g, code):
    o = g.o
    for ins in code:
        if "wait" in ins and not o.no_read: g.e(f"s_waitcnt lgkmcnt({ins['wait']})")
        if ins["k"] == "m" and o.no_mfma: continue
        if ins["k"] == "l" and o.no_read: continue
        if ins["k"] == "v" and o.no_valu: continue
        g.e(ins["t"].replace("s[60-PF]", "s[96:99]" if False else "s[44:47]"))

HA, HC, HD, HS = 32, 64, 96, 24
XV, TO, TE, WD = 2, 10, 12, 16
class Stream:
    def __init__(self): self.l = []
    def e(self, t, **k): self.l.append(dict(t=t, **k))
def w_one(S, j, slot, tag):
    if j == 0:
        S.e(f"s_add_u32 m0, s59, {slot*32768}"); S.e("s_mov_b32 s57, s64")
    else:
        S.e(f"s_add_u32 m0, s59, {slot*32768+j*4096}"); S.e("s_add_u32 s57, s57, 262144")
    S.e(f"buffer_load_dwordx4 v1, {'s[40:43]' if j == 7 else 's[24:27]'}, s57 offen lds", vm=tag)
    if j == 7:
        for t in ("s_add_u32 s60, s60, 1", "s_add_u32 s64, s64, 16384", "s_cmp_eq_u32 s60, 8", "s_cselect_b32 s42, 0, s42",
                  "s_cmp_eq_u32 s60, 16", "s_cselect_b32 s26, 0, s26"): S.e(t)
def x_one(S, n, buf, tag, so="s65"):
    if n < 8:
        S.e(f"s_add_u32 m0, s{66 + (n >> 1)}, {buf*XBUF + (n & 1)*1024}"); S.e("s_nop 0")
        S.e(f"buffer_load_dwordx4 v{XV+n}, s[20:23], {so} offen lds", vm=tag)
    else:
        S.e(f"s_mov_b32 m0, {buf*XBUF + 16*128}"); S.e("s_mov_b64 exec, 0xff")
        S.e(f"buffer_load_dwordx4 v18, s[20:23], {so} offen lds", vm=tag); S.e("s_mov_b64 exec, -1")
def d_reads(S, t, buf):
    cl, half = t & 1, t >> 1
    for mf in range(2):
        r = HA + 8 * t + 4 * mf
        S.e(f"ds_read_b64_tr_b16 v[{r}:{r+1}], v{TO+half} offset:{buf*XBUF + cl*2048 + 8*mf}", ds=1)
        S.e(f"ds_read_b64_tr_b16 v[{r+2}:{r+3}], v{TE+cl+2*half} offset:{buf*XBUF + 8*mf}", ds=1)
def d_mfma(S, o):
    S.e("s_waitcnt lgkmcnt(0)", ds=1)
    if o.mprio: S.e(f"s_setprio {o.mprio}")
    for q in range(8): S.e(f"v_mfma_f32_16x16x32_bf16 {rng(HC+4*q)}, {rng(HA+4*q)}, {rng(HS)}, 0", hv=1)
    if o.mprio: S.e(f"s_setprio {o.hprio}")
def d_cvt(S):
    for q in range(16): S.e(f"v_cvt_pk_bf16_f32 v{HD+q}, v{HC+2*q}, v{HC+2*q+1}", hv=1)
def d_write(S, t): S.e(f"ds_write_b128 v{WD+(t>>1)}, {rng(HD+4*t)} offset:{(t&1)*2048}", ds=1)
def solve_vm(parts):
    for S, env in parts:
        for ins in S.l:
            if "need" in ins: ins.setdefault("n", 63)
    issued = []
    for S, env in parts:
        for ins in S.l:
            if "vm" in ins: issued.append((ins["vm"][0], env[ins["vm"][0]] + ins["vm"][1]))
            if "need" in ins:
                for nm, off in ins["need"]:
                    key = (nm, env[nm] + off)
                    idx = [j for j, k in enumerate(issued) if k == key]
                    if idx: ins["n"] = min(ins["n"], len(issued) - 1 - idx[-1])
def emit_stream(g, S):
    o = g.o
    for ins in S.l:
        if "need" in ins:
            w = []
            if ins["n"] < 63 and not o.no_dma: w.append(f"vmcnt({ins['n']})")
            if ins.get("lg") and not o.no_hwait: w.append("lgkmcnt(0)")
            if w: g.e("s_waitcnt " + " ".join(w))
            continue
        if "vm" in ins and o.no_dma and not ins.get("keep"): continue
        if ins.get("hv") and o.no_hvalu: continue
        if ins.get("ds") and o.no_hwr: continue
        if o.no_hrd and ins["t"].startswith("ds_read"): continue
        if o.no_hw and ins["t"].startswith("ds_write"): continue
        if ins["t"].endswith(":"): g.l.append(ins["t"])
        else: g.e(ins["t"])
def w_rot(S, slot, tag, js, v=10):
    for j in js:
        S.e(f"s_add_u32 s56, s47, {j}"); S.e("s_and_b32 s56, s56, 7")
        S.e("s_lshl_b32 s57, s56, 12"); S.e("s_add_u32 s57, s57, s59"); S.e(f"s_add_u32 m0, s57, {slot*32768}")
        S.e("s_lshl_b32 s57, s56, 18"); S.e(f"s_add_u32 s57, s57, {slot*16384}")
        S.e(f"buffer_load_dwordx4 v{v}, s[24:27], s57 offen lds", vm=tag)
def w_voff(g, hreg, dst=1):
    e = g.e
    e("v_lshrrev_b32 v15, 3, v0")
    e(f"s_lshl_b32 s56, {hreg}, 3")
    e("v_add_u32 v1, s56, v15")
    e("v_bfe_u32 v15, v0, 4, 1")
    e(f"s_and_b32 s56, {hreg}, 1")
    e("s_lshl_b32 s56, s56, 1")
    e("v_or_b32 v15, s56, v15")
    e("v_lshlrev_b32 v15, 1, v15")
    e("v_and_b32 v14, 7, v0")
    e("v_xor_b32 v15, v15, v14")
    e("v_lshlrev_b32 v15, 4, v15")
    e(f"v_lshl_add_u32 v{dst}, v1, 9, v15")

def gen(o):
    global WFIRST
    WFIRST = o.wfirst
    g = G(o); e = g.e
    pro, bodies = build_bodies(o)
    g.l.append(f"""; Fused strided conv1d + per-channel GroupNorm over time + tanh-GELU, one workgroup per CU.
; is evaluated with the 2-parallel fast-FIR identity (U = E*Be, V = O*Bo, P = (O-E')*(Be-Bo);
; @launch grid=(256,1,1) block=(512,1,1) lds={LDS}
.amdgcn_target "amdgcn-amd-amdhsa--gfx950"
.text
.globl {KN}
.p2align 8
.type {KN},@function
{KN}:""")
    e("s_cmp_ge_u32 s2, 256")
    e("s_cbranch_scc1 L_end")
    e("s_load_dwordx16 s[4:19], s[0:1], 0")
    if o.pfcode:
        g.c("pull the whole code into L2 at once instead of line by line")
        e("s_getpc_b64 s[44:45]"); g.lab("L_pc0")
        e("s_mov_b32 s46, L_end - L_pc0"); e("s_mov_b32 s47, 0x20000")
        e("s_lshr_b32 s56, s2, 3"); e(f"s_mul_i32 s56, s56, {128 * o.pfcode}")
        e("v_lshl_add_u32 v1, v0, 7, s56")
        e(f"v_cmp_gt_u32 vcc, {o.pfcode}, v0"); e("s_and_saveexec_b64 s[56:57], vcc"); e("s_cbranch_execz L_nopf")
        e("buffer_load_dword v250, v1, s[44:47], 0 offen")
        g.lab("L_nopf")
        e("s_mov_b64 exec, s[56:57]")
    g.stamp_init(); g.stamp(0)
    e("v_lshrrev_b32 v1, 6, v0")
    e("v_and_b32 v0, 63, v0")
    e("v_readfirstlane_b32 s3, v1")
    e("s_lshr_b32 s57, s2, 3")
    e("s_and_b32 s54, s57, 3")
    e("s_lshr_b32 s47, s2, 5")
    e("s_and_b32 s56, s2, 7")
    e("s_lshl_b32 s58, s56, 3")
    e("s_add_u32 s58, s58, s47")
    e("s_lshr_b32 s52, s58, 5")
    e("s_and_b32 s53, s58, 31")
    e(f"s_mul_i32 s55, s53, {TS}")
    e("s_lshl_b32 s51, s54, 7")
    e("s_and_b32 s50, s3, 3")
    e("s_lshl_b32 s59, s50, 10")
    e(f"s_add_u32 s59, s59, {WB}")
    e("s_mov_b32 s58, 0xffff0000")
    def x_srd():
        e("s_mul_i32 s56, s52, 8192000")
        e("s_lshl_b32 s57, s55, 10")
        e("s_add_u32 s56, s56, s57")
        e(f"s_sub_u32 s22, {X_BYTES}, s56")
        e("s_mov_b32 s23, 0x20000")
        return ["s_add_u32 s20, s4, s56", "s_addc_u32 s21, s5, 0"]
    def w_srd():
        e(f"s_sub_u32 s26, {W_BYTES}, s51")
        e("s_mov_b32 s27, 0x20000")
        return ["s_add_u32 s24, s6, s51", "s_addc_u32 s25, s7, 0"]
    def late_srds():
        e(f"s_mul_i32 s56, s52, {L}")
        e("s_add_u32 s56, s56, s55")
        e("s_lshl_b32 s56, s56, 9")
        e("s_add_u32 s28, s14, s56")
        e("s_addc_u32 s29, s15, 0")
        e(f"s_sub_u32 s30, {L}, s55")
        e(f"s_min_u32 s30, s30, {TS}")
        e("s_lshl_b32 s30, s30, 9")
        e("s_mov_b32 s31, 0x20000")
        e("s_mov_b32 s32, s18"); e("s_mov_b32 s33, s19"); e("s_mov_b32 s34, 0x200000"); e("s_mov_b32 s35, 0x20000")
        e("s_mov_b32 s36, s16"); e("s_mov_b32 s37, s17"); e("s_mov_b32 s38, 256"); e("s_mov_b32 s39, 0x20000")
        e("s_lshl_b32 s48, s52, 2"); e("s_add_u32 s48, s48, s54"); e("s_lshl_b32 s48, s48, 14")
        e("s_lshl_b32 s49, s53, 9"); e("s_add_u32 s49, s49, s48")
    e("s_cmp_lt_u32 s3, 4")
    e("s_cbranch_scc1 L_compute")
    e(f"s_mov_b32 s66, 0x{FTAB & 0xffffffff:08x}"); e(f"s_mov_b32 s67, 0x{FTAB >> 32:08x}")
    e("v_lshrrev_b32 v20, 3, v0")
    e("v_and_b32 v21, 7, v0")
    e("v_lshlrev_b32 v22, 2, v20")
    e("v_lshrrev_b32 v23, v22, s66"); e("v_lshrrev_b32 v24, v22, s67")
    e("v_and_b32 v23, 7, v23"); e("v_and_b32 v24, 7, v24")
    e("v_xor_b32 v23, v23, v21"); e("v_xor_b32 v24, v24, v21")
    e("s_lshr_b32 s56, s50, 1"); e("s_lshl_b32 s56, s56, 10")
    e("s_and_b32 s57, s50, 1"); e("s_lshl_b32 s57, s57, 13"); e("s_add_u32 s56, s56, s57")
    e("v_lshl_add_u32 v22, v20, 14, s56")
    e(f"v_lshl_add_u32 v{XV}, v23, 4, v22")
    e("v_lshl_add_u32 v24, v24, 4, v22")
    e(f"v_add_u32 v{XV+1}, {8*16384}, v24")
    e("v_lshlrev_b32 v18, 4, v0"); e(f"v_add_u32 v18, {256*1024}, v18")
    e("s_lshl_b32 s56, s50, 13")
    for k in (3, 2, 1, 0):
        e(f"s_add_u32 s57, s54, {k}" if o.rot else f"s_mov_b32 s57, {k}"); e("s_and_b32 s57, s57, 3"); e("s_lshl_b32 s57, s57, 11")
        e(f"v_add_u32 v{XV+2*k+1}, s57, v{XV+1}"); e(f"v_add_u32 v{XV+2*k}, s57, v{XV}")
        e(f"s_add_u32 s{66+k}, s56, s57")
        e(f"s_cmp_lg_u32 s{66+k}, 0"); e("s_cselect_b32 s57, 128, 0"); e(f"s_add_u32 s{66+k}, s{66+k}, s57")
    e("s_mov_b32 s65, 0"); e("s_mov_b32 s64, 128")
    fin = x_srd()
    e("s_waitcnt lgkmcnt(0)")
    for t in fin: e(t)
    g.pstamp(3)
    HX0 = Stream()
    for n in range(o.r1): x_one(HX0, n, 0, ("X", 0))
    emit_stream(g, HX0)
    e("s_branch L_helper")

    g.lab("L_compute")
    w_voff(g, "s50", 10)
    if o.cpf:
        e("s_lshl_b32 s56, s47, 18"); e("s_lshl_b32 s57, s54, 13"); e("s_add_u32 s56, s56, s57")
        e("s_lshl_b32 s57, s50, 11"); e("s_add_u32 s56, s56, s57"); e("s_add_u32 s56, s56, 32768")
        e("v_lshl_add_u32 v2, v0, 7, s56")
        e(f"s_mov_b32 s42, {W_BYTES}"); e("s_mov_b32 s43, 0x20000")
    fin = w_srd()
    e("s_waitcnt lgkmcnt(0)")
    for t in fin: e(t)
    g.pstamp(3)
    S = Stream()
    w_rot(S, 0, ("W", 0), range(o.r1))
    w_rot(S, 1, ("W", 0), range(o.w1share))
    emit_stream(g, S)
    if o.cpf:
        e("s_mov_b32 s40, s6"); e("s_mov_b32 s41, s7"); e("s_mov_b64 exec, 0xffff")
        e("buffer_load_dword v249, v2, s[40:43], 0 offen"); e("s_mov_b64 exec, -1")
    e("s_mov_b32 s10, 512"); e("s_mov_b32 s11, 0x20000")
    e("v_and_b32 v11, 15, v0")
    e("v_lshrrev_b32 v12, 4, v0")
    e("s_lshl_b32 s56, s50, 5")
    e("s_add_u32 s56, s56, s51")
    e("v_lshl_add_u32 v13, v11, 1, s56")
    e(f"buffer_load_ushort v{TM}, v13, s[8:11], 0 offen")
    g.pstamp(4)
    late_srds()
    e(f"s_mov_b32 s60, 0x{FTAB & 0xffffffff:08x}"); e(f"s_mov_b32 s61, 0x{FTAB >> 32:08x}")
    for a in range(2):
        e(f"v_add_u32 v13, {a}, v11")
        e("v_and_b32 v14, 15, v13")
        e("v_lshlrev_b32 v14, 2, v14")
        e("v_lshrrev_b64 v[14:15], v14, s[60:61]")
        e("v_and_b32 v14, 7, v14")
        e("v_xor_b32 v14, v14, v12")
        e("v_lshlrev_b32 v14, 4, v14")
        e(f"v_lshl_add_u32 v{1+a}, v13, 7, v14")
        e(f"v_xor_b32 v{3+a}, 64, v{1+a}")
        e(f"v_add_u32 v{5+a}, {DB}, v{1+a}")
        e(f"v_add_u32 v{7+a}, {DB}, v{3+a}")
    e("v_lshrrev_b32 v13, 2, v11")
    e("v_lshl_add_u32 v14, v12, 3, v13")
    e("v_lshrrev_b32 v13, 1, v13")
    e("v_and_b32 v15, 1, v12")
    e("v_lshl_or_b32 v13, v15, 1, v13")
    e("v_lshlrev_b32 v13, 1, v13")
    e("v_bfe_u32 v15, v0, 1, 1")
    e("s_lshl_b32 s56, s50, 1")
    e("v_or_b32 v15, s56, v15")
    e("v_xor_b32 v13, v13, v15")
    e("v_lshlrev_b32 v13, 4, v13")
    e("v_lshl_add_u32 v9, v14, 7, v13")
    e("v_and_b32 v15, 1, v0")
    e("v_lshl_add_u32 v9, v15, 3, v9")
    e(f"v_add_u32 v9, {WB}, v9")
    e(f"s_mov_b32 s62, {-XBUF & 0xffffffff}")
    if o.cdummy:
        sh = {1: 4, 2: 3, 4: 3}.get(o.cdummy, 2)
        e(f"v_lshlrev_b32 v10, {sh}, v0"); e(f"v_add_u32 v10, {DB}, v10"); e(f"s_mov_b32 m0, {DB & 0xffff}")
    for r in range(32): e(f"v_mov_b32 v{AU+r}, 0")
    for r in range(32): e(f"v_mov_b32 v{AP+r}, 0")
    S = Stream()
    w_rot(S, 0, ("W", 0), range(o.r1, 8))
    if o.bara: S.e("s_barrier")
    w_rot(S, 1, ("W", 0), range(o.w1share, 8))
    emit_stream(g, S)
    if o.x1share:
        for t in x_srd(): e(t)
        e("s_lshl_b32 s56, s54, 16"); e("s_lshl_b32 s57, s50, 14"); e("s_add_u32 s56, s56, s57"); e("s_add_u32 s56, s56, 128")
        e("v_lshl_add_u32 v13, v0, 10, s56")
        e("s_mov_b64 exec, 0xffff"); e("buffer_load_dword v248, v13, s[20:23], 0 offen"); e("s_mov_b64 exec, -1")
    g.pstamp(5)
    e(f"s_waitcnt vmcnt({8 - o.w1share + (1 if o.x1share else 0)})")
    g.pstamp(6)
    e(f"v_lshlrev_b32 v{TM}, 16, v{TM}")
    for r in range(32): e(f"v_mov_b32 v{AV+r}, v{TM}")
    if o.cprio: e(f"s_setprio {o.cprio}")
    g.bar()
    g.stamp(1)
    emit(g, pro)
    for p in (0, 1):
        e("s_mov_b32 s64, 4")
        g.l.append(f".p2align {o.align}")
        g.lab(f"L_body{p}")
        emit(g, bodies[p])
        e(f"s_cbranch_scc1 L_body{p}")
    g.stamp(2)
    e("v_add_u32 v13, 16, v0")
    e("v_and_b32 v13, 63, v13")
    e("v_lshlrev_b32 v13, 2, v13")
    e(f"ds_bpermute_b32 v{TM}, v13, v{AU}")
    def pk(op, d, a, b, c=None):
        e(f"v_pk_{op}_f32 v[{d}:{d+1}], v[{a}:{a+1}], v[{b}:{b+1}]" + (f", v[{c}:{c+1}]" if c is not None else ""))
    T2 = TM + 2
    e("s_nop 4")
    for s in range(7):
        for h in (0, 2):
            pk("add", AP + 4 * s + h, AP + 4 * s + h, AV + 4 * s + h)
            pk("add", AV + 4 * s + h, AV + 4 * s + h, AU + 4 * s + h)
            pk("add", AP + 4 * s + h, AP + 4 * s + h, AU + 4 * s + 4 + h)
    for h in (0, 2):
        pk("add", AP + 28 + h, AP + 28 + h, AV + 28 + h)
        pk("add", AV + 28 + h, AV + 28 + h, AU + 28 + h)
    for r in range(3): e(f"v_add_f32 v{AP+28+r}, v{AP+28+r}, v{AU+r+1}")
    e("s_waitcnt lgkmcnt(0)")
    e(f"v_add_f32 v{AP+31}, v{AP+31}, v{TM}")
    e("s_mov_b32 exec_lo, 0"); e("s_mov_b32 exec_hi, 0xffff0000")
    for s in range(5, 8):
        e(f"v_mov_b32 v{AV+4*s+3}, 0"); e(f"v_mov_b32 v{AP+4*s+3}, 0")
    e("s_cmp_lg_u32 s53, 31")
    e("s_cbranch_scc1 L_nolast")
    e(f"v_mov_b32 v{AP+7}, 0")
    for s in range(2, 5):
        e(f"v_mov_b32 v{AV+4*s+3}, 0"); e(f"v_mov_b32 v{AP+4*s+3}, 0")
    g.lab("L_nolast")
    e("s_mov_b64 exec, -1")
    S0, Q0 = AU, AU + 8
    Y0 = AV
    for k in range(4):
        pk("mul", Q0 + 2 * k, Y0 + 2 * k, Y0 + 2 * k)
    for k in range(4):
        r = Y0 + 8 + 2 * k
        pk("add", S0 + 2 * k, r - 8, r); pk("fma", Q0 + 2 * k, r, r, Q0 + 2 * k)
    for m in range(2, 8):
        for k in range(4):
            r = Y0 + 8 * m + 2 * k
            pk("add", S0 + 2 * k, S0 + 2 * k, r); pk("fma", Q0 + 2 * k, r, r, Q0 + 2 * k)
    pk("add", S0, S0, S0 + 2); pk("add", Q0, Q0, Q0 + 2); pk("add", S0 + 4, S0 + 4, S0 + 6); pk("add", Q0 + 4, Q0 + 4, Q0 + 6)
    pk("add", S0, S0, S0 + 4); pk("add", Q0, Q0, Q0 + 4)
    e(f"v_add_f32 v14, v{S0}, v{S0+1}")
    e(f"v_add_f32 v15, v{Q0}, v{Q0+1}")
    e("s_lshl_b32 s56, s50, 7")
    e("s_add_u32 s56, s56, s49")
    e("v_permlane32_swap_b32 v14, v15")
    e("v_lshl_add_u32 v13, v0, 3, s56")
    e("v_add_f32 v14, v14, v15")
    e("v_mov_b32 v15, v14")
    e("s_nop 1")
    e("v_permlane16_swap_b32 v14, v15")
    e("v_add_f32 v14, v14, v15")
    e("v_mov_b32 v15, v14")
    e("s_nop 1")
    e("v_permlane32_swap_b32 v14, v15")
    e("v_and_b32 v15, 0x7fffffff, v15")
    e("s_mov_b64 exec, 0xffff")
    e(f"buffer_store_dwordx2 v[14:15], v13, s[32:35], 0 offen {o.st_flags}")
    e("s_mov_b64 exec, -1")
    g.stamp(3)
    e(f"v_mul_u32_u24 v13, {64*YP}, v12")
    e("s_lshl_b32 s56, s50, 6")
    e("v_lshl_add_u32 v11, v11, 2, s56")
    e("v_add_u32 v13, v13, v11")
    g.bar()
    for s in range(8):
        for ev in range(2):
            for r in range(4):
                e(f"ds_write_b32 v13, v{(AP if ev else AV)+4*s+r} offset:{(2*s+ev+16*r)*YP}")
    e("s_waitcnt lgkmcnt(0)")
    g.bar()
    g.stamp(4)
    e("s_branch L_final_rd")

    g.lab("L_helper")
    g.inhelper = True
    HP = Stream()
    HP.e("s_mov_b32 s64, 32768"); HP.e("s_mov_b32 s60, 2"); HP.e("s_mov_b32 s65, 128")
    HQ = Stream()
    HQ.e("buffer_load_ushort v114, v113, s[16:19], 0 offen", vm=("G", 0), keep=1)
    HQ.e("s_mov_b32 s16, s12"); HQ.e("s_mov_b32 s17, s13")
    HQ.e("buffer_load_ushort v115, v113, s[16:19], 0 offen", vm=("G", 0), keep=1)
    H0 = Stream()
    for n in range(o.r1, 9): x_one(H0, n, 0, ("X", 0), so="0")
    if o.bara: H0.e("s_barrier")
    H0.e("", need=[("X", 0)]); H0.e("s_barrier")
    H1a = Stream()
    for t in range(4): d_reads(H1a, t, 0)
    d_mfma(H1a, o); H1a.e("s_nop 7"); d_cvt(H1a)
    for k in range(o.npf0 if o.pf else 0):
        H1a.e("buffer_load_dword v116, v19, s[44:47], 0 offen", vm=("P", 0)); H1a.e("v_add_u32 v19, s63, v19")
    H1 = Stream()
    H1.e("s_barrier")
    SW = []
    n_ad, n_ag, n_bg = o.nad, o.nag, o.nbg
    for par in range(2):
        nb = par ^ 1
        a1, a2, b1, b2 = Stream(), Stream(), Stream(), Stream()
        seq = [(lambda S, n=n: x_one(S, n, nb, ("X", 1))) for n in range(9)] + [(lambda S, j=j: w_one(S, j, 0, ("W", 2))) for j in range(8)]
        seqb = [(lambda S, j=j: w_one(S, j, 1, ("W", 3))) for j in range(8)]
        for t in range(4): d_write(a1, t)
        for f in seq[:n_ad]: f(a1)
        a1.e("", need=[], lg=1); a1.e("s_barrier")
        for f in seq[n_ad:n_ag]: f(a1)
        a1.e("", need=[("W", 1)]); a1.e("s_barrier")
        for f in seq[n_ag:o.naa]: f(a2)
        if o.pf and o.sitea:
            a2.e("s_mov_b32 s46, s9"); a2.e("buffer_load_dword v116, v19, s[44:47], 0 offen", vm=("P", 0))
            a2.e("s_mov_b32 s9, 0"); a2.e("s_mov_b32 s46, s8")
        for t in ("s_add_u32 s65, s65, 128", "s_add_u32 s61, s61, 1", "s_cmp_ge_u32 s61, 7", "s_cselect_b32 s22, 0, s22"): a2.e(t)
        a2.e("", need=[("X", 1)]); a2.e("s_barrier")
        restb = seq[o.naa:] + seqb
        for t in range(4): d_reads(b1, t, nb)
        for f in restb[:n_bg]: f(b1)
        b1.e("", need=[("W", 2)]); b1.e("s_barrier")
        for f in restb[n_bg:]: f(b2)
        if o.pf:
            b2.e("buffer_load_dword v116, v19, s[44:47], 0 offen", vm=("P", 0)); b2.e("v_add_u32 v19, s63, v19"); b2.e("s_mov_b32 s46, s8")
        if not o.no_atomic:
            b2.e("s_cmp_lg_u32 s61, s62"); b2.e(f"s_cbranch_scc1 L_nocnt{par}")
            b2.e("s_mov_b64 exec, 1"); b2.e("buffer_atomic_add v118, v117, s[36:39], 0 offen sc1"); b2.e("s_mov_b64 exec, -1")
            b2.e(f"L_nocnt{par}:")
        d_mfma(b2, o); b2.e("s_nop 7"); d_cvt(b2)
        if o.drain: b2.e("s_waitcnt vmcnt(0)")
        b2.e("s_barrier")
        SW.append((a1, a2, b1, b2))
    parts = [(HX0, dict(X=0)), (HP, dict(X=0, W=0)), (H0, dict(X=0)), (H1a, dict(P=0)), (HQ, dict(G=0)), (H1, dict(P=0))]
    for st in range(8):
        for k, S in enumerate(SW[st & 1]):
            if not (st == 7 and k == 3): parts.append((S, dict(X=st, W=2 * st, P=0)))
    solve_vm(parts)
    g.pstamp(4)
    emit_stream(g, HP)
    w_voff(g, "s50")
    for t in w_srd(): e(t)
    e("s_mov_b32 s40, s24"); e("s_mov_b32 s41, s25"); e("s_mov_b32 s42, s26"); e("s_mov_b32 s43, 0x20000")
    late_srds()
    e("s_mov_b32 s16, s10"); e("s_mov_b32 s17, s11"); e("s_mov_b32 s18, 512"); e("s_mov_b32 s19, 0x20000")
    e("s_mov_b32 s47, 0x20000")
    e("v_and_b32 v112, 31, v0")
    e("v_lshrrev_b32 v113, 5, v0")
    e("v_lshl_add_u32 v112, v112, 1, v113")
    e("v_lshl_add_u32 v113, v112, 1, s51")
    if o.pf:
        e("s_mov_b32 s44, s20"); e("s_mov_b32 s45, s21"); e("s_mov_b32 s46, s22")
        e("s_cmp_eq_u32 s50, 0"); e("s_cselect_b32 s57, 128, 0"); e("s_cselect_b32 s8, s46, 0")
        e("s_lshl_b32 s56, s54, 16"); e("s_add_u32 s56, s56, s57"); e(f"s_add_u32 s56, s56, {128 * (o.pfx0 - 1)}")
        e("v_lshl_add_u32 v19, v0, 10, s56")
        e("s_mov_b32 s63, 128")
        e("s_bitcmp0_b32 s50, 0"); e("s_cbranch_scc1 L_pfj")
        e("s_mov_b32 s44, s6"); e("s_mov_b32 s45, s7")
        e("s_cmp_eq_u32 s50, 1"); e(f"s_cselect_b32 s46, {W_BYTES}, 0"); e("s_mov_b32 s8, s46")
        e("s_lshr_b32 s57, s2, 3")
        e("s_lshr_b32 s56, s57, 2"); e("s_lshl_b32 s56, s56, 18")
        e("s_and_b32 s57, s57, 3"); e("s_lshl_b32 s57, s57, 13")
        e("s_add_u32 s56, s56, s57"); e(f"s_add_u32 s56, s56, {32768 * o.pfw0}")
        e("v_lshl_add_u32 v19, v0, 7, s56")
        e("s_mov_b32 s63, 32768")
        g.lab("L_pfj")
        e("s_cmp_eq_u32 s50, 2"); e("s_cselect_b32 s9, s46, 0")
    e(f"s_mov_b32 s4, 0x{STAB & 0xffffffff:08x}"); e(f"s_mov_b32 s5, 0x{STAB >> 32:08x}")
    e("v_and_b32 v20, 60, v0")
    e("v_lshrrev_b64 v[20:21], v20, s[4:5]")
    e("v_and_b32 v20, 15, v20")
    e("v_and_b32 v26, 15, v0")
    e("v_lshlrev_b32 v28, 2, v26")
    e("v_lshrrev_b64 v[28:29], v28, s[4:5]")
    e("v_and_b32 v28, 15, v28")
    e(f"s_mov_b32 s4, 0x{FTAB & 0xffffffff:08x}"); e(f"s_mov_b32 s5, 0x{FTAB >> 32:08x}")
    def swz(dst, idx, q):
        e(f"v_and_b32 v22, 15, v{idx}")
        e("v_lshlrev_b32 v22, 2, v22")
        e("v_lshrrev_b64 v[22:23], v22, s[4:5]")
        e("v_and_b32 v22, 7, v22")
        e(f"v_xor_b32 v22, v22, v{q}")
        e("v_lshlrev_b32 v22, 4, v22")
        e(f"v_lshl_add_u32 v{dst}, v{idx}, 7, v22")
    e("v_and_b32 v21, 3, v0")
    e("v_lshrrev_b32 v27, 4, v0")
    swz(30, 20, 21)
    swz(31, 28, 27)
    e("s_lshl_b32 s56, s50, 12")
    e(f"s_add_u32 s57, s56, {OB}")
    e(f"v_add_u32 v{TO}, s57, v30")
    e(f"s_add_u32 s57, s56, {2048+128}")
    e(f"v_add_u32 v{TE}, s57, v30"); e(f"v_add_u32 v{TE+1}, 2048, v{TE}")
    e(f"s_add_u32 s57, s56, {DB}")
    e(f"v_add_u32 v{WD}, s57, v31")
    e("s_cmp_lg_u32 s50, 3"); e("s_cbranch_scc1 L_nowrap")
    e("v_add_u32 v20, 1, v20")
    swz(TE + 1, 20, 21)
    g.lab("L_nowrap")
    e(f"v_xor_b32 v{TO+1}, 64, v{TO}"); e(f"v_xor_b32 v{TE+2}, 64, v{TE}"); e(f"v_xor_b32 v{TE+3}, 64, v{TE+1}")
    e(f"v_xor_b32 v{WD+1}, 64, v{WD}")
    e("v_and_b32 v20, 1, v0"); e("v_lshlrev_b32 v20, 4, v20")
    e("s_movk_i32 s56, 0x3f80"); e("v_lshlrev_b32 v20, v20, s56")
    e("v_bfe_u32 v21, v0, 1, 3"); e("v_lshlrev_b32 v27, 1, v27")
    for r in range(2):
        if r: e("v_add_u32 v27, 1, v27")
        e("v_cmp_eq_u32 vcc, v21, v27"); e("s_nop 1")
        e(f"v_cndmask_b32 v{HS+r}, 0, v20, vcc")
        e(f"v_lshlrev_b32 v23, 3, v{HS+r}")
        e(f"v_and_b32 v23, 0x80008000, v23")
        e(f"v_or_b32 v{HS+2+r}, v{HS+r}, v23")
    e("s_mov_b32 s61, 0")
    if o.hprio: e(f"s_setprio {o.hprio}")
    g.pstamp(7)
    emit_stream(g, H0)
    g.stamp(1)
    emit_stream(g, H1a)
    emit_stream(g, HQ)
    e("s_mov_b32 s62, 99")
    e("v_mov_b32 v117, 0"); e("v_mov_b32 v118, 0")
    e("s_cmp_lg_u32 s50, 3"); e("s_cbranch_scc1 L_noclean")
    e("v_lshl_add_u32 v117, v0, 3, s49")
    e("v_mov_b32 v118, -1"); e("v_mov_b32 v119, -1")
    e("buffer_store_dwordx2 v[118:119], v117, s[32:35], 0 offen sc1")
    e("s_and_b32 s62, s2, 3"); e("s_add_u32 s62, s62, 2")
    e("s_lshl_b32 s56, s2, 5"); e("s_and_b32 s56, s56, 128")
    e("v_mov_b32 v117, s56"); e("v_mov_b32 v118, 1")
    g.lab("L_noclean")
    emit_stream(g, H1)
    g.lab("L_hloop")
    for par in range(2):
        for k, S in enumerate(SW[par]):
            if o.hstamps and k in (1, 3):
                for r in range(70, 100, 2): e(f"s_mov_b64 s[{r}:{r+1}], s[{r+2}:{r+3}]")
                e("s_memtime s[100:101]"); e("s_waitcnt lgkmcnt(0)")
            if par == 1 and k == 3:
                e("s_cmp_eq_u32 s61, 8"); e("s_cbranch_scc1 L_hdone")
            emit_stream(g, S)
    e("s_branch L_hloop")
    g.lab("L_hdone")
    g.stamp(2)
    e("s_cmp_lg_u32 s3, 4")
    e("s_cbranch_scc1 L_hrest")
    e("v_and_b32 v8, 1, v0"); e("v_lshlrev_b32 v8, 7, v8")
    e("buffer_load_dword v7, v8, s[36:39], 0 offen sc1")
    e("v_lshl_add_u32 v6, v0, 4, s48")
    e("v_mov_b32 v2, v112")
    e("s_movk_i32 s61, 0x1000"); e("s_movk_i32 s62, 0x2000"); e("s_movk_i32 s63, 0x3000")
    e("s_waitcnt vmcnt(1)")
    e("v_lshlrev_b32 v4, 16, v114"); e("v_lshlrev_b32 v5, 16, v115")
    GR = 128
    def gather_loads():
        for u in range(16):
            so = ["0", "s61", "s62", "s63"][u >> 2]
            e(f"buffer_load_dwordx4 v[{GR+4*u}:{GR+4*u+3}], v6, s[32:35], {so} offen offset:{(u&3)*1024} {o.ld_flags}")
    g.bar()
    e("s_mov_b32 s60, 0")
    g.lab("L_chk")
    e("s_waitcnt vmcnt(0)")
    e(f"v_cmp_gt_u32 vcc, {0 if o.no_atomic else 0x80}, v7"); e("s_cbranch_vccz L_chk_ok")
    e("s_add_u32 s60, s60, 1"); e("s_cmp_ge_u32 s60, 0x100000"); e("s_cbranch_scc1 L_chk_ok")
    e("buffer_load_dword v7, v8, s[36:39], 0 offen sc1")
    e("s_branch L_chk")
    g.lab("L_chk_ok")
    gather_loads()
    g.bar()
    def final_reads():
        e("v_lshrrev_b32 v20, 3, v0")
        e("s_lshl_b32 s56, s3, 5")
        e("v_add_u32 v20, s56, v20")
        e("v_and_b32 v21, 7, v0")
        e(f"v_mul_u32_u24 v22, {YP}, v20")
        e("v_lshl_add_u32 v22, v21, 5, v22")
        for rg in range(4):
            e(f"ds_read_b128 v[{64+8*rg}:{64+8*rg+3}], v22 offset:{rg*8*YP}")
            e(f"ds_read_b128 v[{64+8*rg+4}:{64+8*rg+7}], v22 offset:{rg*8*YP+16}")
    final_reads()
    e("s_mov_b32 s60, 0")
    g.lab("L_poll")
    e("s_waitcnt vmcnt(0)")
    e(f"v_or_b32 v14, v{GR+1}, v{GR+3}")
    for u in range(1, 16): e(f"v_or3_b32 v14, v14, v{GR+4*u+1}, v{GR+4*u+3}")
    e("v_cmp_gt_i32 vcc, 0, v14")
    e("s_cbranch_vccz L_poll_ok")
    e("s_add_u32 s60, s60, 1"); e("s_cmp_ge_u32 s60, 0x40000"); e("s_cbranch_scc1 L_poll_ok")
    gather_loads()
    e("s_branch L_poll")
    g.lab("L_poll_ok")
    g.stamp(4)
    for u in range(2, 16):
        d = GR + 4 * (u & 1)
        pk("add", d, d, GR + 4 * u); pk("add", d + 2, d + 2, GR + 4 * u + 2)
    pk("add", GR, GR, GR + 4); pk("add", GR + 2, GR + 2, GR + 6)
    e("s_mov_b32 s61, 0x%08x" % f2u(1.0 / L))
    e("s_nop 0")
    e(f"v_permlane32_swap_b32 v{GR}, v{GR+2}")
    e(f"v_permlane32_swap_b32 v{GR+1}, v{GR+3}")
    e(f"v_add_f32 v10, v{GR}, v{GR+2}")
    e(f"v_add_f32 v11, v{GR+1}, v{GR+3}")
    e("v_mul_f32 v10, s61, v10")
    e("v_mul_f32 v11, s61, v11")
    e("v_fma_f32 v11, -v10, v10, v11")
    e("v_max_f32 v11, 0, v11")
    e("v_add_f32 v11, 0x%08x, v11" % f2u(1e-5))
    e("v_rsq_f32 v11, v11")
    e("v_lshlrev_b32 v12, 2, v2")
    e(f"v_add_u32 v12, {MISC}, v12")
    e("v_mul_f32 v11, v4, v11")
    e("v_fma_f32 v10, -v10, v11, v5")
    e("ds_write_b32 v12, v11")
    e("ds_write_b32 v12, v10 offset:256")
    e("s_branch L_final")
    g.lab("L_hrest")
    e("s_waitcnt vmcnt(0)")
    g.bar()
    g.bar()
    g.lab("L_final_rd")
    final_reads()
    g.lab("L_final")
    Y = 64
    e("v_lshlrev_b32 v23, 9, v20")
    e("v_lshl_add_u32 v23, v21, 4, v23")
    e("v_add_u32 v23, s51, v23")
    e("v_lshlrev_b32 v24, 5, v21")
    e(f"v_add_u32 v24, {MISC}, v24")
    K1 = -2.0 * 0.7978845608028654 * 1.4426950408889634
    K2 = K1 * 0.044715
    e("s_mov_b32 s60, 0x%08x" % f2u(K1)); e("s_mov_b32 s61, 0x%08x" % f2u(K1))
    e("v_mov_b32 v26, 0x%08x" % f2u(K2)); e("v_mov_b32 v27, 0x%08x" % f2u(K2))
    e("s_setprio 0")
    e("s_waitcnt lgkmcnt(0)")
    g.bar()
    g.stamp(5)
    e("ds_read_b128 v[32:35], v24"); e("ds_read_b128 v[40:43], v24 offset:256")
    e("ds_read_b128 v[36:39], v24 offset:16"); e("ds_read_b128 v[44:47], v24 offset:272")
    e("s_waitcnt lgkmcnt(0)")
    for rg in range(4):
        y = Y + 8 * rg; P = 96 + 8 * rg
        for k in range(4): pk("fma", y + 2 * k, y + 2 * k, 32 + 2 * k, 40 + 2 * k)
        for k in range(4): pk("mul", P + 2 * k, y + 2 * k, y + 2 * k)
        for k in range(4): e(f"v_pk_fma_f32 v[{P+2*k}:{P+2*k+1}], v[{P+2*k}:{P+2*k+1}], v[26:27], s[60:61]")
        for k in range(4): pk("mul", P + 2 * k, P + 2 * k, y + 2 * k)
        for k in range(8): e(f"v_exp_f32 v{P+k}, v{P+k}")
        for k in range(4): e(f"v_pk_add_f32 v[{P+2*k}:{P+2*k+1}], v[{P+2*k}:{P+2*k+1}], 1.0 op_sel_hi:[1,0]")
        for k in range(8): e(f"v_rcp_f32 v{P+k}, v{P+k}")
        for k in range(4): pk("mul", y + 2 * k, y + 2 * k, P + 2 * k)
        for k in range(4): e(f"v_cvt_pk_bf16_f32 v{48+4*rg+k}, v{y+2*k}, v{y+2*k+1}")
        e(f"buffer_store_dwordx4 v[{48+4*rg}:{51+4*rg}], v23, s[28:31], 0 offen {o.out_flags}")
        if rg < 3: e("v_add_u32 v23, 4096, v23")
    g.stamp(6)
    if o.stamps:
        e("s_waitcnt vmcnt(0)"); g.stamp(7)
    g.stamp_flush()
    g.lab("L_end")
    e("s_endpgm")
    g.l.append(f""".section .rodata,"a"
.p2align 6
.amdhsa_kernel {KN}
  .amdhsa_next_free_vgpr 256
  .amdhsa_next_free_sgpr 102
  .amdhsa_accum_offset 256
  .amdhsa_group_segment_fixed_size 0
  .amdhsa_kernarg_size 64
  .amdhsa_user_sgpr_count 2
  .amdhsa_user_sgpr_kernarg_segment_ptr 1
  .amdhsa_system_sgpr_workgroup_id_x 1
.end_amdhsa_kernel""")
    return "\n".join(g.l) + "\n"

def parser():
    ap = argparse.ArgumentParser()
    ap.add_argument("-o", default="k2.s")
    ap.add_argument("--stamps", action="store_true")
    for f in ("no-mfma", "no-read", "no-dma", "no-valu", "no-hvalu", "no-hwr", "no-mask", "no-xld", "no-hrd", "no-hw", "wfirst", "no-hwait", "hstamps", "no-atomic", "pstamps"): ap.add_argument("--" + f, action="store_true")
    ap.add_argument("--gammaoff", type=int, default=1)
    ap.add_argument("--alpha", type=int, default=20)
    ap.add_argument("--npe", type=int, default=7)
    ap.add_argument("--npre", type=int, default=2)
    ap.add_argument("--cdummy", type=int, default=0)
    ap.add_argument("--cap", type=int, default=2)
    ap.add_argument("--wpos", default="")
    ap.add_argument("--pfslot", type=int, default=44)
    ap.add_argument("--pfw", type=int, default=2)
    ap.add_argument("--pfx", type=int, default=2)
    ap.add_argument("--pfcode", type=int, default=6)
    ap.add_argument("--pfw0", type=int, default=2)
    ap.add_argument("--pfx0", type=int, default=3)
    ap.add_argument("--pfhalf", type=int, default=0)
    ap.add_argument("--delta", type=int, default=46)
    ap.add_argument("--dshift", type=int, default=2)
    ap.add_argument("--nd", type=int, default=2)
    ap.add_argument("--nad", type=int, default=2)
    ap.add_argument("--nag", type=int, default=6)
    ap.add_argument("--naa", type=int, default=17)
    ap.add_argument("--nbg", type=int, default=3)
    ap.add_argument("--mprio", type=int, default=1)
    ap.add_argument("--drain", type=int, default=0)
    ap.add_argument("--x1early", type=int, default=1)
    ap.add_argument("--align", type=int, default=3)
    ap.add_argument("--w1c", type=int, default=0)
    ap.add_argument("--npf0", type=int, default=0)
    ap.add_argument("--cpf", type=int, default=1)
    ap.add_argument("--rot", type=int, default=1)
    ap.add_argument("--x1share", type=int, default=1)
    ap.add_argument("--r1", type=int, default=4)
    ap.add_argument("--bara", type=int, default=1)
    ap.add_argument("--w1share", type=int, default=1)
    ap.add_argument("--sitea", type=int, default=1)
    ap.add_argument("--amp", default="")
    ap.add_argument("--vmargin", type=int, default=6)
    ap.add_argument("--lead", type=int, default=24)
    ap.add_argument("--wstep", type=int, default=3)
    ap.add_argument("--nwa", type=int, default=1)
    ap.add_argument("--nwb", type=int, default=5)
    ap.add_argument("--nb", type=int, default=16)
    ap.add_argument("--quiet", type=int, default=10)
    ap.add_argument("--nx1", type=int, default=5)
    ap.add_argument("--amargin", type=int, default=8)
    ap.add_argument("--minlat", type=int, default=8)
    ap.add_argument("--waitahead", type=int, default=12)
    ap.add_argument("--cprio", type=int, default=0)
    ap.add_argument("--hprio", type=int, default=0)
    ap.add_argument("--pf", type=int, default=1)
    ap.add_argument("--st-flags", default="sc1")
    ap.add_argument("--ld-flags", default="sc1")
    ap.add_argument("--out-flags", default="sc0 sc1")
    return ap
if __name__ == "__main__":
    o = parser().parse_args()
    open(o.o, "w").write(gen(o))
```

```python
import argparse, struct
KN = "standalone__self_sup_conv_stem_hubert__speech_kernel"
X_BYTES = 2 * 16000 * 512
W_BYTES = 15 * 256 * 512
L = 7993
TS = 250
XBUF = 257 * 128
OB = 129 * 128
DB = 2 * XBUF
WB = DB + 131 * 128
MISC = WB + 65536
def clsE(c): return (16 * c + (c > 0)) * 128
def clsO(c): return OB + 16 * c * 128
def clsD(c): return 16 * c * 128
SIG = [1, 3, 9, 11, 4, 12, 10, 14, 5, 7, 13, 15, 0, 2, 8, 6]
STAB = sum(v << (4 * i) for i, v in enumerate(SIG))
LDS = MISC + 2048 + 8 * 512
FTAB = 0x7762574435221100
YP = 272
YW = 64 * YP + 64
def f2u(x): return struct.unpack("<I", struct.pack("<f", x))[0]
def ftab(i): return (FTAB >> (4 * (i & 15))) & 7

AU, AV, AP = 16, 48, 80
FR, BE, BO, CR, TM = 112, 180, 196, 212, 244
SLOT = {"E": list(range(11)), "O": [0, 1, 2, 3, 4, 11, 12, 13, 14, 15, 16], "D": list(range(11))}
G2A = {"U": "E", "V": "O", "P": "D"}
def freg(arr, u): return FR + 4 * SLOT[arr][u]
def rng(b, n=4): return f"v[{b}:{b+n-1}]"

class G:
    def __init__(self, o):
        self.o = o; self.l = []; self.inhelper = False
    def e(self, s): self.l.append("    " + s)
    def lab(self, s): self.l.append(s + ":")
    def c(self, s): self.l.append("    ; " + s)
    def bar(self):
        self.e("s_barrier")
    def pstamp(self, p):
        if self.o.pstamps: self.stamp(p, True)
    def stamp(self, p, force=False):
        if not self.o.stamps or (self.o.hstamps and self.inhelper): return
        if self.o.pstamps and p > 2 and not force: return
        b = 70 + 4 * p
        self.e(f"s_memrealtime s[{b}:{b+1}]"); self.e(f"s_memtime s[{b+2}:{b+3}]"); self.e("s_waitcnt lgkmcnt(0)")
    def stamp_init(self):
        if not self.o.stamps: return
        for r in range(70, 102, 2): self.e(f"s_mov_b64 s[{r}:{r+1}], 0")
    def stamp_flush(self):
        if not self.o.stamps: return
        e = self.e
        if self.o.amp:
            a, b, K, wv, wg = [int(x) for x in self.o.amp.split(",")]
            e(f"s_cmp_lg_u32 s3, {wv}"); e("s_cbranch_scc1 L_end")
            if wg >= 0:
                e(f"s_cmp_lg_u32 s2, {wg}"); e("s_cbranch_scc1 L_end")
            e(f"s_sub_u32 s56, s{70+4*b}, s{70+4*a}"); e(f"s_mul_i32 s56, s56, {K}")
            e("s_memrealtime s[60:61]"); e("s_waitcnt lgkmcnt(0)")
            self.lab("L_amp")
            e("s_memrealtime s[62:63]"); e("s_waitcnt lgkmcnt(0)")
            e("s_sub_u32 s57, s62, s60"); e("s_cmp_lt_u32 s57, s56"); e("s_cbranch_scc1 L_amp")
            return
        e("s_waitcnt vmcnt(0) lgkmcnt(0)")
        e("s_lshl_b32 s56, s2, 3"); e("s_add_u32 s56, s56, s3"); e("s_lshl_b32 s56, s56, 7"); e("s_add_u32 s56, s56, 0x100000")
        e("v_mov_b32 v10, s56"); e("s_mov_b64 exec, 1")
        for p in range(8):
            b = 70 + 4 * p
            for k in range(4): e(f"v_mov_b32 v{12+k}, s{b+k}")
            e(f"buffer_store_dwordx4 v[12:15], v10, s[32:35], 0 offen offset:{16*p}"); e("s_waitcnt vmcnt(0)")

def umajor(K): return [(u - s_, s_, u) for u in range(7 + K) for s_ in range(min(u, 7), -1, -1) if 0 <= u - s_ < K]

def sub_ops(dst, a, b, t):
    return [(f"v_lshlrev_b32 v{t}, 16, v{a}", [a], [t]), (f"v_lshlrev_b32 v{t+2}, 16, v{b}", [b], [t + 2]),
            (f"v_and_b32 v{t+1}, s58, v{a}", [a], [t + 1]), (f"v_and_b32 v{t+3}, s58, v{b}", [b], [t + 3]),
            (f"v_sub_f32 v{t}, v{t}, v{t+2}", [t, t + 2], [t]), (f"v_sub_f32 v{t+1}, v{t+1}, v{t+3}", [t + 1, t + 3], [t + 1]),
            (f"v_cvt_pk_bf16_f32 v{dst}, v{t}, v{t+1}", [t, t + 1], [dst])]
def chain(units):
    out = []
    for u in units:
        if out and len(u) == 7:
            last = out.pop(); out += [u[0], last] + u[1:]
        else: out += u
    return out
def cunit(k, r, cs): return sub_ops(CR + 16 * cs + 4 * k + r, BE + 4 * k + r, BO + 4 * k + r, TM + 4 * (r & 1))
def smajor(K): return [(k, s_, s_ + k) for s_ in range(8) for k in range(K)]

class Period:
    def __init__(self, p, cc, o):
        self.p = p
        KV = 4 - p
        N = self.N = 96 - 8 * p
        P0 = self.P0 = 64 - 8 * p
        self.alpha = o.alpha; self.gamma = P0 + o.gammaoff
        self.delta = (o.delta - (o.dshift if p else 0)) if cc == 0 else -1
        mf = []
        for k, s, u in smajor(4): mf.append(("U", k, s, u))
        for k, s, u in smajor(KV): mf.append(("V", k, s, u))
        for k, s, u in smajor(4): mf.append(("P", k, s, u))
        assert len(mf) == N
        self.mf = mf
        first = {}; last = {}
        for i, (g, k, s, u) in enumerate(mf):
            for key in ((g, "F", u), (g, "B", k)):
                first.setdefault(key, i); last[key] = i
        c0s = self.gamma + 4 + o.minlat
        npre = o.npre
        units = [(k, r) for k in range(4) for r in range(4)]
        own = []
        for k, r in units[npre:]:
            if p == 1 and k == 3: own.append([(f"v_mov_b32 v{CR+16*cc+12+r}, v{BE+12+r}", [BE + 12 + r], [CR + 16 * cc + 12 + r])])
            else: own.append(cunit(k, r, cc))
        valu = [(0, P0 - 2, chain(own), 0), (c0s, N, chain([cunit(k, r, cc ^ 1) for k, r in units[:npre]]), 1)]
        self.npre = npre
        ld = []
        lim = self.alpha - o.amargin
        lim2 = self.gamma - o.amargin
        def free_after(arr, u, limit):
            ts = [i for i, (g_, k_, s_, u_) in enumerate(mf) if i < limit and SLOT[G2A[g_]][u_] == SLOT[arr][u]]
            return max(ts) if ts else 0
        npe = o.npe
        for u in range(npe, 11): ld.append((("E", u), 0, 0, first[("U", "F", u)], lim2))
        for k in range(o.nbo, KV):
            for h in (0, 1): ld.append((("Bo", k, h), 0, 0, min(32 + k, (4 * k - npre) * (P0 - 6) // (16 - npre) - 1), lim))
        for u in range(7 + KV):
            ld.append((("O", u), 0, free_after("O", u, 32), first[("V", "F", u)], self.alpha if cc == 0 else lim2))
        for u in range(11):
            ld.append((("D", u), 0, max(self.delta, 1, free_after("D", u, P0)), first[("P", "F", u)], N - 1))
        b = self.gamma
        for h in (0, 1):
            ld.append((("Be", 0, h), 1, b, c0s, N - 1)); ld.append((("Bo", 0, h), 1, b, c0s, N - 1))
            for k in (1, 2, 3): ld.append((("Be", k, h), 1, b, min(N + k, c0s + 20 * k), N - 1))
            for k in range(1, o.nbo): ld.append((("Bo", k, h), 1, b, c0s + 20 * k, N - 1))
        for u in range(npe): ld.append((("E", u), 1, max(b, free_after("E", u, N)), N + first[("U", "F", u)], N - 1))
        slots = [[] for _ in range(N)]
        pend = list(ld)
        def dl(x): return min(x[3], x[4] + o.minlat)
        for t in range(N):
            av = [x for x in pend if x[2] <= t and dl(x) - t <= o.lead and not (self.alpha < t < self.delta)]
            if not av: continue
            x = min(av, key=lambda x: (dl(x), ld.index(x)))
            pend.remove(x)
            assert t <= x[4], (p, x, t)
            assert x[3] - t >= o.minlat, (p, x, t)
            slots[t].append(("ld", x[0], x[1]))
        assert not pend, pend
        self.slots = slots
        self.valu = valu
        self.pre = [it for t in range(N) for it in slots[t] if it[2] == 1]

def ld_dst(name):
    if name[0] in "EOD": return list(range(freg(*name), freg(*name) + 4))
    base = BE if name[0] == "Be" else BO
    r = base + 4 * name[1] + 2 * name[2]
    return [r, r + 1]
def ld_text(name, cc):
    if name[0] in "EOD":
        u = name[1]; a = u >> 3
        if name[0] == "D": return f"ds_read_b128 {rng(freg(*name))}, v{5 + a + 2*cc} offset:{clsD(u & 7)}"
        return f"ds_read_b128 {rng(freg(*name))}, v{1 + a + 2*cc} offset:{(clsE if name[0] == 'E' else clsO)(u & 7)}"
    d = ld_dst(name)
    j = 2 * name[1] + (name[0] == "Bo")
    return f"ds_read_b64_tr_b16 v[{d[0]}:{d[1]}], v9 offset:{cc * 32768 + j * 4096 + name[2] * 512}"

def build_bodies(o):
    per = {(p, cc): Period(p, cc, o) for p in (0, 1) for cc in (0, 1)}
    bodies = {}
    for p in (0, 1):
        body = []
        for cc in (0, 1):
            P = per[(p, cc)]
            vs = [[] for _ in range(P.N)]
            extra = [[] for _ in range(P.N)]
            if o.cdummy:
                txt = {1: f"ds_write_b128 v10, v[{TM}:{TM+3}]", 2: f"ds_write_b64 v10, v[{TM}:{TM+1}]", 3: f"ds_write_b32 v10, v{TM}",
                       4: f"ds_write_b64 v10, v[{TM}:{TM+1}]", 5: f"ds_write_b32 v10, v{TM}", 6: f"ds_write_addtid_b32 v{TM}"}[o.cdummy]
                ts = {4: (10, 12, 50, 52), 5: (10, 11, 12, 13, 50, 51, 52, 53), 6: (10, 11, 12, 13, 50, 51, 52, 53)}.get(o.cdummy, (10, 50))
                for t in ts: extra[t].append(dict(k="l", name=("Z", 0), rel=0, cc=cc, wr=[], t=txt + f" offset:{1024*(t&3)}"))
            if cc == 1:
                extra[P.gamma - 9].append(dict(k="x", t="s_sub_u32 s62, 0, s62"))
                for q in range(4): extra[P.gamma - 8 + 2 * q].append(dict(k="x", t=f"v_add_u32 v{1+q}, s62, v{1+q}"))
                extra[P.N - 3].append(dict(k="x", t="s_sub_u32 s64, s64, 1"))
                extra[P.N - 2].append(dict(k="x", t="s_cmp_lg_u32 s64, 0"))
            stream = [(a, b, op, rel) for (a, b, ops, rel) in P.valu for op in ops]
            n0 = len(P.valu[0][2]); t0e = P.valu[0][1] - o.vmargin; t1s = P.valu[1][0]
            pos = 0
            for t in range(P.N):
                cap = o.cap - len(P.slots[t]) - len(extra[t]) - (1 if t in (P.alpha, P.gamma, P.delta) else 0)
                cap = min(cap, 2)
                want = min(n0, -(-(t + 1) * n0 // t0e)) if t < t1s else n0 + -(-(t + 1 - t1s) * (len(stream) - n0) // (P.N - 2 - t1s))
                while cap > 0 and pos < min(want, len(stream)) and stream[pos][0] <= t:
                    a, b, (tx, rd, wr), rel = stream[pos]
                    assert t < b, ("valu late", p, t, stream[pos])
                    vs[t].append(dict(k="v", t=tx, rd=rd, wr=wr, rel=rel)); pos += 1; cap -= 1
            assert pos == len(stream), ("valu overflow", p, pos)
            for t, (g, k, s, u) in enumerate(P.mf):
                acc = {"U": AU, "V": AV, "P": AP}[g] + 4 * s
                bop = {"U": BE, "V": BO, "P": CR + 16 * cc}[g] + 4 * k
                body.append(dict(k="m", t=f"v_mfma_f32_16x16x32_bf16 {rng(acc)}, {rng(freg(G2A[g], u))}, {rng(bop)}, {rng(acc)}",
                                 g=g, kk=k, u=u, cc=cc, slot=t, rd=list(range(freg(G2A[g], u), freg(G2A[g], u) + 4)) + list(range(bop, bop + 4))))
                if t == P.delta: body.append(dict(k="b", which="d", cc=cc, t="s_barrier"))
                if t == P.gamma and cc == 0 and p == 0: body.append(dict(k="x", t="s_waitcnt vmcnt(0)"))
                if t == P.gamma: body.append(dict(k="b", which="g", cc=cc, t="s_barrier"))
                for it in P.slots[t]:
                    body.append(dict(k="l", name=it[1], rel=it[2], cc=cc, t=ld_text(it[1], cc ^ it[2]), wr=ld_dst(it[1])))
                if t == P.alpha: body.append(dict(k="b", which="a", cc=cc, t="s_barrier"))
                body += vs[t]; body += extra[t]
        bodies[p] = body
    pro = [dict(k="l", name=it[1], rel=1, cc=1, t=ld_text(it[1], 0), wr=ld_dst(it[1])) for it in per[(0, 1)].pre]
    pro += [dict(k="v", t=tx, rd=rd, wr=wr, rel=1) for tx, rd, wr in chain([cunit(q >> 2, q & 3, 0) for q in range(o.npre)])]
    pro.append(dict(k="x", t="s_nop 0", wait=0))
    def run(final):
        changed = False
        issued = []
        mark = -1
        tag = {}
        now = 0
        seq = [(pro, -1)] + [(bodies[st >> 2], st) for st in range(8)]
        for code, st in seq:
            for ins in code:
                i = 2 * st + ins.get("cc", 0) if st >= 0 else -1
                if ins["k"] == "v" and st >= 0: i = cur
                if ins["k"] == "m": cur = i; now += 1
                need = -1
                if ins["k"] in "mv":
                    for r in ins["rd"]:
                        if r in tag: need = max(need, tag[r][1])
                if ins["k"] == "b":
                    kinds = {"a": ("Be", "Bo", "D"), "g": ("E", "O"), "d": ()}[ins["which"]]
                    for j, (x, sc, _) in enumerate(issued):
                        if x["name"][0] in kinds and sc <= (i if x["name"][0] != "D" else i - 1): need = max(need, j)
                if "wait" in ins: mark = max(mark, len(issued) - 1 - ins["wait"])
                if need > mark:
                    assert not final
                    n = len(issued) - 1 - need
                    recent = sum(1 for (_, _, tt) in issued if tt > now - o.waitahead)
                    n = min(n, recent, 15)
                    ins["wait"] = min(n, ins.get("wait", 99)); changed = True
                    mark = max(mark, len(issued) - 1 - ins["wait"])
                if ins["k"] == "l":
                    sc = i + ins["rel"]
                    issued.append((ins, sc, now))
                    for q, r in enumerate(ins["wr"]): tag[r] = ((ins["name"], sc, q), len(issued) - 1)
                elif ins["k"] == "v":
                    sc = i + ins["rel"]
                    for r in ins["rd"]:
                        if BE <= r < BO + 16:
                            nm, s2, q = tag[r][0]
                            base = BE if r < BO else BO
                            assert nm == (("Be" if r < BO else "Bo"), (r - base) >> 2, ((r - base) >> 1) & 1) and s2 == sc, (ins, tag[r], sc)
                    for r in ins["wr"]: tag[r] = (("val", sc, now), -1)
                elif ins["k"] == "m":
                    arr = {"U": "E", "V": "O", "P": "D"}[ins["g"]]
                    for q, r in enumerate(ins["rd"][:4]): assert tag[r][0] == ((arr, ins["u"]), i, q), (ins, tag[r], i)
                    for q, r in enumerate(ins["rd"][4:]):
                        if ins["g"] == "P": assert tag[r][0][0] == "val" and tag[r][0][1] == i and tag[r][0][2] < now - 1, (ins, tag[r])
                        else: assert tag[r][0][:2] == ((("Be" if ins["g"] == "U" else "Bo"), ins["kk"], q >> 1), i), (ins, tag[r], i)
        return changed
    while run(False): pass
    run(True)
    return pro, bodies

def emit(g, code):
    o = g.o
    for ins in code:
        if "wait" in ins and not o.no_read: g.e(f"s_waitcnt lgkmcnt({ins['wait']})")
        if ins["k"] == "m" and o.no_mfma: continue
        if ins["k"] == "l" and o.no_read: continue
        if ins["k"] == "v" and o.no_valu: continue
        g.e(ins["t"].replace("s[60-PF]", "s[96:99]" if False else "s[44:47]"))

HA, HC, HD, HS = 32, 64, 96, 24
XV, TO, TE, WD = 2, 10, 12, 16
class Stream:
    def __init__(self): self.l = []
    def e(self, t, **k): self.l.append(dict(t=t, **k))
def w_one(S, j, slot, tag):
    if j == 0:
        S.e(f"s_add_u32 m0, s59, {slot*32768}"); S.e("s_mov_b32 s57, s64")
    else:
        S.e(f"s_add_u32 m0, s59, {slot*32768+j*4096}"); S.e("s_add_u32 s57, s57, 262144")
    S.e(f"buffer_load_dwordx4 v1, {'s[40:43]' if j == 7 else 's[24:27]'}, s57 offen lds", vm=tag)
    if j == 7:
        for t in ("s_add_u32 s60, s60, 1", "s_add_u32 s64, s64, 16384", "s_cmp_eq_u32 s60, 8", "s_cselect_b32 s42, 0, s42",
                  "s_cmp_eq_u32 s60, 16", "s_cselect_b32 s26, 0, s26"): S.e(t)
def x_one(S, n, buf, tag, so="s65"):
    if n < 8:
        S.e(f"s_add_u32 m0, s{66 + (n >> 1)}, {buf*XBUF + (n & 1)*1024}"); S.e("s_nop 0")
        S.e(f"buffer_load_dwordx4 v{XV+n}, s[20:23], {so} offen lds", vm=tag)
    else:
        S.e(f"s_mov_b32 m0, {buf*XBUF + 16*128}"); S.e("s_mov_b64 exec, 0xff")
        S.e(f"buffer_load_dwordx4 v18, s[20:23], {so} offen lds", vm=tag); S.e("s_mov_b64 exec, -1")
def d_reads(S, t, buf):
    cl, half = t & 1, t >> 1
    for mf in range(2):
        r = HA + 8 * t + 4 * mf
        S.e(f"ds_read_b64_tr_b16 v[{r}:{r+1}], v{TO+half} offset:{buf*XBUF + cl*2048 + 8*mf}", ds=1)
        S.e(f"ds_read_b64_tr_b16 v[{r+2}:{r+3}], v{TE+cl+2*half} offset:{buf*XBUF + 8*mf}", ds=1)
def d_mfma(S, o):
    S.e("s_waitcnt lgkmcnt(0)", ds=1)
    if o.mprio: S.e(f"s_setprio {o.mprio}")
    for q in range(8): S.e(f"v_mfma_f32_16x16x32_bf16 {rng(HC+4*q)}, {rng(HA+4*q)}, {rng(HS)}, 0", hv=1)
    if o.mprio: S.e(f"s_setprio {o.hprio}")
def d_cvt(S):
    for q in range(16): S.e(f"v_cvt_pk_bf16_f32 v{HD+q}, v{HC+2*q}, v{HC+2*q+1}", hv=1)
def d_write(S, t): S.e(f"ds_write_b128 v{WD+(t>>1)}, {rng(HD+4*t)} offset:{(t&1)*2048}", ds=1)
def solve_vm(parts):
    for S, env in parts:
        for ins in S.l:
            if "need" in ins: ins.setdefault("n", 63)
    issued = []
    for S, env in parts:
        for ins in S.l:
            if "vm" in ins: issued.append((ins["vm"][0], env[ins["vm"][0]] + ins["vm"][1]))
            if "need" in ins:
                for nm, off in ins["need"]:
                    key = (nm, env[nm] + off)
                    idx = [j for j, k in enumerate(issued) if k == key]
                    if idx: ins["n"] = min(ins["n"], len(issued) - 1 - idx[-1])
def emit_stream(g, S):
    o = g.o
    for ins in S.l:
        if "need" in ins:
            w = []
            if ins["n"] < 63 and not o.no_dma: w.append(f"vmcnt({ins['n']})")
            if ins.get("lg") and not o.no_hwait: w.append("lgkmcnt(0)")
            if w: g.e("s_waitcnt " + " ".join(w))
            continue
        if "vm" in ins and o.no_dma and not ins.get("keep"): continue
        if ins.get("hv") and o.no_hvalu: continue
        if ins.get("ds") and o.no_hwr: continue
        if o.no_hrd and ins["t"].startswith("ds_read"): continue
        if o.no_hw and ins["t"].startswith("ds_write"): continue
        t = ins["t"]
        if t.endswith(" lds"):
            fl = o.wfl if ins["vm"][0] == "W" else o.xfl
            if fl: t = t[:-4] + " " + fl + " lds"
        if t.endswith(":"): g.l.append(t)
        else: g.e(t)
def w_rot(S, slot, tag, js, v=10):
    for j in js:
        S.e(f"s_add_u32 s56, s47, {j}"); S.e("s_and_b32 s56, s56, 7")
        S.e("s_lshl_b32 s57, s56, 12"); S.e("s_add_u32 s57, s57, s59"); S.e(f"s_add_u32 m0, s57, {slot*32768}")
        S.e("s_lshl_b32 s57, s56, 18"); S.e(f"s_add_u32 s57, s57, {slot*16384}")
        S.e(f"buffer_load_dwordx4 v{v}, s[24:27], s57 offen lds", vm=tag)
def w_voff(g, hreg, dst=1):
    e = g.e
    e("v_lshrrev_b32 v15, 3, v0")
    e(f"s_lshl_b32 s56, {hreg}, 3")
    e("v_add_u32 v1, s56, v15")
    e("v_bfe_u32 v15, v0, 4, 1")
    e(f"s_and_b32 s56, {hreg}, 1")
    e("s_lshl_b32 s56, s56, 1")
    e("v_or_b32 v15, s56, v15")
    e("v_lshlrev_b32 v15, 1, v15")
    e("v_and_b32 v14, 7, v0")
    e("v_xor_b32 v15, v15, v14")
    e("v_lshlrev_b32 v15, 4, v15")
    e(f"v_lshl_add_u32 v{dst}, v1, 9, v15")

def gen(o):
    global WFIRST
    WFIRST = o.wfirst
    g = G(o); e = g.e
    pro, bodies = build_bodies(o)
    g.l.append(f"""; Fused strided conv1d + per-channel GroupNorm over time + tanh-GELU, one workgroup per CU.
; is evaluated with the 2-parallel fast-FIR identity (U = E*Be, V = O*Bo, P = (O-E')*(Be-Bo);
; @launch grid=(256,1,1) block=(512,1,1) lds={LDS}
.amdgcn_target "amdgcn-amd-amdhsa--gfx950"
.text
.globl {KN}
.p2align 8
.type {KN},@function
{KN}:""")
    e("s_cmp_ge_u32 s2, 256")
    e("s_cbranch_scc1 L_end")
    e("s_load_dwordx16 s[4:19], s[0:1], 0")
    if o.pfcode:
        g.c("pull the whole code into L2 at once instead of line by line")
        e("s_getpc_b64 s[44:45]"); g.lab("L_pc0")
        e("s_mov_b32 s46, L_end - L_pc0"); e("s_mov_b32 s47, 0x20000")
        e("s_lshr_b32 s56, s2, 3"); e(f"s_mul_i32 s56, s56, {128 * o.pfcode}")
        e("v_lshl_add_u32 v1, v0, 7, s56")
        e(f"v_cmp_gt_u32 vcc, {o.pfcode}, v0"); e("s_and_saveexec_b64 s[56:57], vcc"); e("s_cbranch_execz L_nopf")
        e("buffer_load_dword v243, v1, s[44:47], 0 offen")
        g.lab("L_nopf")
        e("s_mov_b64 exec, s[56:57]")
    g.stamp_init(); g.stamp(0)
    e("v_lshrrev_b32 v1, 6, v0")
    e("v_and_b32 v0, 63, v0")
    e("v_readfirstlane_b32 s3, v1")
    e("s_lshr_b32 s57, s2, 3")
    e("s_and_b32 s54, s57, 3")
    e("s_lshr_b32 s47, s2, 5")
    e("s_and_b32 s56, s2, 7")
    e("s_lshl_b32 s58, s56, 3")
    e("s_add_u32 s58, s58, s47")
    e("s_lshr_b32 s52, s58, 5")
    e("s_and_b32 s53, s58, 31")
    e(f"s_mul_i32 s55, s53, {TS}")
    e("s_lshl_b32 s51, s54, 7")
    e("s_and_b32 s50, s3, 3")
    e("s_lshl_b32 s59, s50, 10")
    e(f"s_add_u32 s59, s59, {WB}")
    e("s_mov_b32 s58, 0xffff0000")
    def x_srd():
        e("s_mul_i32 s56, s52, 8192000")
        e("s_lshl_b32 s57, s55, 10")
        e("s_add_u32 s56, s56, s57")
        e(f"s_sub_u32 s22, {X_BYTES}, s56")
        e("s_mov_b32 s23, 0x20000")
        return ["s_add_u32 s20, s4, s56", "s_addc_u32 s21, s5, 0"]
    def w_srd():
        e(f"s_sub_u32 s26, {W_BYTES}, s51")
        e("s_mov_b32 s27, 0x20000")
        return ["s_add_u32 s24, s6, s51", "s_addc_u32 s25, s7, 0"]
    def late_srds():
        e(f"s_mul_i32 s56, s52, {L}")
        e("s_add_u32 s56, s56, s55")
        e("s_lshl_b32 s56, s56, 9")
        e("s_add_u32 s28, s14, s56")
        e("s_addc_u32 s29, s15, 0")
        e(f"s_sub_u32 s30, {L}, s55")
        e(f"s_min_u32 s30, s30, {TS}")
        e("s_lshl_b32 s30, s30, 9")
        e("s_mov_b32 s31, 0x20000")
        e("s_mov_b32 s32, s18"); e("s_mov_b32 s33, s19"); e("s_mov_b32 s34, 0x200000"); e("s_mov_b32 s35, 0x20000")
        e("s_mov_b32 s36, s16"); e("s_mov_b32 s37, s17"); e("s_mov_b32 s38, 256"); e("s_mov_b32 s39, 0x20000")
        e("s_lshl_b32 s48, s52, 2"); e("s_add_u32 s48, s48, s54"); e("s_lshl_b32 s48, s48, 14")
        e("s_lshl_b32 s49, s53, 9"); e("s_add_u32 s49, s49, s48")
    e("s_cmp_lt_u32 s3, 4")
    e("s_cbranch_scc1 L_compute")
    e(f"s_mov_b32 s66, 0x{FTAB & 0xffffffff:08x}"); e(f"s_mov_b32 s67, 0x{FTAB >> 32:08x}")
    e("v_lshrrev_b32 v20, 3, v0")
    e("v_and_b32 v21, 7, v0")
    e("v_lshlrev_b32 v22, 2, v20")
    e("v_lshrrev_b32 v23, v22, s66"); e("v_lshrrev_b32 v24, v22, s67")
    e("v_and_b32 v23, 7, v23"); e("v_and_b32 v24, 7, v24")
    e("v_xor_b32 v23, v23, v21"); e("v_xor_b32 v24, v24, v21")
    e("s_lshr_b32 s56, s50, 1"); e("s_lshl_b32 s56, s56, 10")
    e("s_and_b32 s57, s50, 1"); e("s_lshl_b32 s57, s57, 13"); e("s_add_u32 s56, s56, s57")
    e("v_lshl_add_u32 v22, v20, 14, s56")
    e(f"v_lshl_add_u32 v{XV}, v23, 4, v22")
    e("v_lshl_add_u32 v24, v24, 4, v22")
    e(f"v_add_u32 v{XV+1}, {8*16384}, v24")
    e("v_lshlrev_b32 v18, 4, v0"); e(f"v_add_u32 v18, {256*1024}, v18")
    e("s_lshl_b32 s56, s50, 13")
    for k in (3, 2, 1, 0):
        e(f"s_add_u32 s57, s54, {k}" if o.rot else f"s_mov_b32 s57, {k}"); e("s_and_b32 s57, s57, 3"); e("s_lshl_b32 s57, s57, 11")
        e(f"v_add_u32 v{XV+2*k+1}, s57, v{XV+1}"); e(f"v_add_u32 v{XV+2*k}, s57, v{XV}")
        e(f"s_add_u32 s{66+k}, s56, s57")
        e(f"s_cmp_lg_u32 s{66+k}, 0"); e("s_cselect_b32 s57, 128, 0"); e(f"s_add_u32 s{66+k}, s{66+k}, s57")
    e("s_mov_b32 s65, 0"); e("s_mov_b32 s64, 128")
    fin = x_srd()
    e("s_waitcnt lgkmcnt(0)")
    for t in fin: e(t)
    g.pstamp(3)
    HX0 = Stream()
    for n in range(o.r1): x_one(HX0, n, 0, ("X", 0))
    emit_stream(g, HX0)
    e("s_branch L_helper")

    g.lab("L_compute")
    w_voff(g, "s50", 10)
    if o.cpf:
        e("s_lshl_b32 s56, s47, 18"); e("s_lshl_b32 s57, s54, 13"); e("s_add_u32 s56, s56, s57")
        e("s_lshl_b32 s57, s50, 11"); e("s_add_u32 s56, s56, s57"); e("s_add_u32 s56, s56, 32768")
        e("v_lshl_add_u32 v2, v0, 7, s56")
        e(f"s_mov_b32 s42, {W_BYTES}"); e("s_mov_b32 s43, 0x20000")
    fin = w_srd()
    e("s_waitcnt lgkmcnt(0)")
    for t in fin: e(t)
    g.pstamp(3)
    S = Stream()
    w_rot(S, 0, ("W", 0), range(o.r1))
    w_rot(S, 1, ("W", 0), range(o.w1share))
    emit_stream(g, S)
    if o.cpf:
        e("s_mov_b32 s40, s6"); e("s_mov_b32 s41, s7"); e("s_mov_b64 exec, 0xffff")
        e("buffer_load_dword v242, v2, s[40:43], 0 offen"); e("s_mov_b64 exec, -1")
    e("s_mov_b32 s62, s10"); e("s_mov_b32 s63, s11")
    e("s_mov_b32 s10, 512"); e("s_mov_b32 s11, 0x20000")
    e("v_and_b32 v11, 15, v0")
    e("v_lshrrev_b32 v12, 4, v0")
    e("s_lshl_b32 s56, s50, 5")
    e("s_add_u32 s56, s56, s51")
    e("v_lshl_add_u32 v13, v11, 1, s56")
    e(f"buffer_load_ushort v{TM}, v13, s[8:11], 0 offen")
    g.pstamp(4)
    late_srds()
    e(f"s_mov_b32 s60, 0x{FTAB & 0xffffffff:08x}"); e(f"s_mov_b32 s61, 0x{FTAB >> 32:08x}")
    for a in range(2):
        e(f"v_add_u32 v13, {a}, v11")
        e("v_and_b32 v14, 15, v13")
        e("v_lshlrev_b32 v14, 2, v14")
        e("v_lshrrev_b64 v[14:15], v14, s[60:61]")
        e("v_and_b32 v14, 7, v14")
        e("v_xor_b32 v14, v14, v12")
        e("v_lshlrev_b32 v14, 4, v14")
        e(f"v_lshl_add_u32 v{1+a}, v13, 7, v14")
        e(f"v_xor_b32 v{3+a}, 64, v{1+a}")
        e(f"v_add_u32 v{5+a}, {DB}, v{1+a}")
        e(f"v_add_u32 v{7+a}, {DB}, v{3+a}")
    e("v_lshrrev_b32 v13, 2, v11")
    e("v_lshl_add_u32 v14, v12, 3, v13")
    e("v_lshrrev_b32 v13, 1, v13")
    e("v_and_b32 v15, 1, v12")
    e("v_lshl_or_b32 v13, v15, 1, v13")
    e("v_lshlrev_b32 v13, 1, v13")
    e("v_bfe_u32 v15, v0, 1, 1")
    e("s_lshl_b32 s56, s50, 1")
    e("v_or_b32 v15, s56, v15")
    e("v_xor_b32 v13, v13, v15")
    e("v_lshlrev_b32 v13, 4, v13")
    e("v_lshl_add_u32 v9, v14, 7, v13")
    e("v_and_b32 v15, 1, v0")
    e("v_lshl_add_u32 v9, v15, 3, v9")
    e(f"v_add_u32 v9, {WB}, v9")
    e("s_mov_b32 s60, s62"); e("s_mov_b32 s61, s63")
    e(f"s_mov_b32 s62, {-XBUF & 0xffffffff}")
    if o.cdummy:
        sh = {1: 4, 2: 3, 4: 3}.get(o.cdummy, 2)
        e(f"v_lshlrev_b32 v10, {sh}, v0"); e(f"v_add_u32 v10, {DB}, v10"); e(f"s_mov_b32 m0, {DB & 0xffff}")
    for r in range(32): e(f"v_mov_b32 v{AU+r}, 0")
    for r in range(32): e(f"v_mov_b32 v{AP+r}, 0")
    S = Stream()
    w_rot(S, 0, ("W", 0), range(o.r1, 8))
    if o.bara: S.e("s_barrier")
    w_rot(S, 1, ("W", 0), range(o.w1share, 8))
    emit_stream(g, S)
    if o.x1share:
        for t in x_srd(): e(t)
        e("s_lshl_b32 s56, s54, 16"); e("s_lshl_b32 s57, s50, 14"); e("s_add_u32 s56, s56, s57"); e("s_add_u32 s56, s56, 128")
        e("v_lshl_add_u32 v13, v0, 10, s56")
        e("s_mov_b64 exec, 0xffff"); e("buffer_load_dword v241, v13, s[20:23], 0 offen"); e("s_mov_b64 exec, -1")
    g.pstamp(5)
    nlate = 8 - o.w1share + (1 if o.x1share else 0)
    e(f"s_waitcnt vmcnt({nlate + 8 - o.r1})")
    g.pstamp(6)
    e("v_lshl_add_u32 v13, v0, 1, s51")
    e("s_mov_b32 s8, s60"); e("s_mov_b32 s9, s61")
    e("buffer_load_ushort v11, v13, s[8:11], 0 offen")
    e("s_mov_b32 s8, s12"); e("s_mov_b32 s9, s13")
    e("buffer_load_ushort v12, v13, s[8:11], 0 offen")
    e("v_add_u32 v10, 16, v0"); e("v_and_b32 v10, 63, v10"); e("v_lshlrev_b32 v10, 2, v10")
    e("s_lshl_b32 s56, s50, 7"); e("s_add_u32 s56, s56, s49"); e("v_lshl_add_u32 v13, v0, 3, s56")
    e(f"v_lshlrev_b32 v{TM}, 16, v{TM}")
    for r in range(32): e(f"v_mov_b32 v{AV+r}, v{TM}")
    e(f"s_waitcnt vmcnt({nlate + 2})")
    if o.cprio: e(f"s_setprio {o.cprio}")
    g.bar()
    g.stamp(1)
    emit(g, pro)
    for p in (0, 1):
        e("s_mov_b32 s64, 4")
        g.l.append(f".p2align {o.align}")
        g.lab(f"L_body{p}")
        emit(g, bodies[p])
        e(f"s_cbranch_scc1 L_body{p}")
    g.stamp(2)
    def pk(op, d, a, b, c=None):
        e(f"v_pk_{op}_f32 v[{d}:{d+1}], v[{a}:{a+1}], v[{b}:{b+1}]" + (f", v[{c}:{c+1}]" if c is not None else ""))
    YE = CR
    S0, Q0 = FR + 44, FR + 52
    e(f"ds_bpermute_b32 v{TM}, v10, v{AU}")
    for q in range(16): pk("add", YE + 2 * q, AU + 2 * q, AV + 2 * q)
    for q in range(14): pk("add", AV + 2 * q, AV + 2 * q, AU + 4 + 2 * q)
    for r in range(3): e(f"v_add_f32 v{AV+28+r}, v{AV+28+r}, v{AU+r+1}")
    def mask(base, first_last, lab):
        e("s_mov_b32 exec_lo, 0"); e("s_mov_b32 exec_hi, 0xffff0000")
        for s_ in range(5, 8): e(f"v_mov_b32 v{base+4*s_+3}, 0")
        e(f"s_cbranch_scc1 {lab}")
        for s_ in range(first_last, 5): e(f"v_mov_b32 v{base+4*s_+3}, 0")
        g.lab(lab)
        e("s_mov_b64 exec, -1")
    e("s_cmp_lg_u32 s53, 31")
    mask(YE, 2, "L_nolast0")
    for k in range(4): pk("mul", Q0 + 2 * k, YE + 2 * k, YE + 2 * k)
    for k in range(4):
        pk("add", S0 + 2 * k, YE + 2 * k, YE + 8 + 2 * k); pk("fma", Q0 + 2 * k, YE + 8 + 2 * k, YE + 8 + 2 * k, Q0 + 2 * k)
    def accum(base, ms):
        for m in ms:
            for k in range(4):
                r = base + 8 * m + 2 * k
                pk("add", S0 + 2 * k, S0 + 2 * k, r); pk("fma", Q0 + 2 * k, r, r, Q0 + 2 * k)
    accum(YE, (2, 3))
    e("s_waitcnt lgkmcnt(0)")
    e(f"v_add_f32 v{AV+31}, v{AV+31}, v{TM}")
    for q in range(16): pk("add", AP + 2 * q, AP + 2 * q, AV + 2 * q)
    mask(AP, 1, "L_nolast1")
    accum(AP, range(4))
    pk("add", S0, S0, S0 + 2); pk("add", Q0, Q0, Q0 + 2); pk("add", S0 + 4, S0 + 4, S0 + 6); pk("add", Q0 + 4, Q0 + 4, Q0 + 6)
    pk("add", S0, S0, S0 + 4); pk("add", Q0, Q0, Q0 + 4)
    e(f"v_add_f32 v14, v{S0}, v{S0+1}")
    e(f"v_add_f32 v15, v{Q0}, v{Q0+1}")
    e(f"s_mul_i32 s56, s50, {YW}")
    e("s_mov_b32 m0, s56")
    e("v_permlane32_swap_b32 v14, v15")
    e("v_add_f32 v14, v14, v15")
    e("v_mov_b32 v15, v14")
    e("s_nop 1")
    e("v_permlane16_swap_b32 v14, v15")
    e("v_add_f32 v14, v14, v15")
    e("v_mov_b32 v15, v14")
    e("s_nop 1")
    e("v_permlane32_swap_b32 v14, v15")
    e("v_and_b32 v15, 0x7fffffff, v15")
    e("s_mov_b64 exec, 0xffff")
    e(f"buffer_store_dwordx2 v[14:15], v13, s[32:35], 0 offen {o.st_flags}")
    e("s_mov_b64 exec, -1")
    g.stamp(3)
    g.bar()
    for s_ in range(8):
        for ev in range(2):
            for r in range(4):
                j = s_ | ((r & 1) << 3) | (ev << 4) | ((r >> 1) << 5)
                e(f"ds_write_addtid_b32 v{(AP if ev else YE)+4*s_+r} offset:{j*YP}")
    e("v_mov_b32 v114, v11"); e("v_mov_b32 v115, v12")
    e("s_waitcnt lgkmcnt(0)")
    g.bar()
    g.stamp(4)
    def final_reads():
        e("v_lshrrev_b32 v20, 3, v0")
        e("v_and_b32 v21, 7, v0")
        e("v_lshrrev_b32 v22, 1, v20"); e("v_and_b32 v23, 1, v20"); e("v_lshl_add_u32 v22, v23, 4, v22")
        e(f"v_mul_u32_u24 v22, {YP}, v22")
        e("v_lshrrev_b32 v23, 1, v21"); e(f"v_mul_u32_u24 v23, {YW}, v23"); e("v_add_u32 v22, v22, v23")
        e("v_and_b32 v23, 1, v21"); e("v_lshl_add_u32 v22, v23, 5, v22")
        e("s_and_b32 s56, s3, 1"); e(f"s_mul_i32 s56, s56, {32*YP}"); e("s_lshr_b32 s57, s3, 1"); e("s_lshl_b32 s57, s57, 6")
        e("s_add_u32 s56, s56, s57"); e("v_add_u32 v22, s56, v22")
        for rg in range(4):
            e(f"ds_read_b128 v[{64+8*rg}:{64+8*rg+3}], v22 offset:{rg*4*YP}")
            e(f"ds_read_b128 v[{64+8*rg+4}:{64+8*rg+7}], v22 offset:{rg*4*YP+16}")
        e("s_lshl_b32 s56, s3, 5"); e("v_add_u32 v20, s56, v20")
    final_reads()
    e("s_branch L_final")

    g.lab("L_helper")
    g.inhelper = True
    HP = Stream()
    HP.e("s_mov_b32 s64, 32768"); HP.e("s_mov_b32 s60, 2"); HP.e("s_mov_b32 s65, 128")
    HQ = Stream()
    HQ.e("buffer_load_ushort v114, v113, s[16:19], 0 offen", vm=("G", 0), keep=1)
    HQ.e("s_mov_b32 s16, s12"); HQ.e("s_mov_b32 s17, s13")
    HQ.e("buffer_load_ushort v115, v113, s[16:19], 0 offen", vm=("G", 0), keep=1)
    H0 = Stream()
    for n in range(o.r1, 9): x_one(H0, n, 0, ("X", 0), so="0")
    if o.bara: H0.e("s_barrier")
    H0.e("", need=[("X", 0)]); H0.e("s_barrier")
    H1a = Stream()
    for t in range(4): d_reads(H1a, t, 0)
    d_mfma(H1a, o); H1a.e("s_nop 7"); d_cvt(H1a)
    for k in range(o.npf0 if o.pf else 0):
        H1a.e("buffer_load_dword v116, v19, s[44:47], 0 offen", vm=("P", 0)); H1a.e("v_add_u32 v19, s63, v19")
    H1 = Stream()
    H1.e("s_barrier")
    SW = []
    n_ad, n_ag, n_bg = o.nad, o.nag, o.nbg
    for par in range(2):
        nb = par ^ 1
        a1, a2, b1, b2 = Stream(), Stream(), Stream(), Stream()
        seq = [(lambda S, n=n: x_one(S, n, nb, ("X", 1))) for n in range(9)] + [(lambda S, j=j: w_one(S, j, 0, ("W", 2))) for j in range(8)]
        seqb = [(lambda S, j=j: w_one(S, j, 1, ("W", 3))) for j in range(8)]
        for t in range(4): d_write(a1, t)
        for f in seq[:n_ad]: f(a1)
        a1.e("", need=[], lg=1); a1.e("s_barrier")
        for f in seq[n_ad:n_ag]: f(a1)
        a1.e("", need=[("W", 1)]); a1.e("s_barrier")
        for f in seq[n_ag:o.naa]: f(a2)
        if o.pf and o.sitea:
            a2.e("s_mov_b32 s46, s9"); a2.e("buffer_load_dword v116, v19, s[44:47], 0 offen", vm=("P", 0))
            a2.e("s_mov_b32 s9, 0"); a2.e("s_mov_b32 s46, s8")
        for t in ("s_add_u32 s65, s65, 128", "s_add_u32 s61, s61, 1", "s_cmp_ge_u32 s61, 7", "s_cselect_b32 s22, 0, s22"): a2.e(t)
        a2.e("", need=[("X", 1)]); a2.e("s_barrier")
        restb = seq[o.naa:] + seqb
        for t in range(4): d_reads(b1, t, nb)
        for f in restb[:n_bg]: f(b1)
        b1.e("", need=[("W", 2)]); b1.e("s_barrier")
        for f in restb[n_bg:]: f(b2)
        if o.pf:
            b2.e("buffer_load_dword v116, v19, s[44:47], 0 offen", vm=("P", 0)); b2.e("v_add_u32 v19, s63, v19"); b2.e("s_mov_b32 s46, s8")
        if not o.no_atomic:
            b2.e("s_cmp_lg_u32 s61, s62"); b2.e(f"s_cbranch_scc1 L_nocnt{par}")
            b2.e("s_mov_b64 exec, 1"); b2.e("buffer_atomic_add v118, v117, s[36:39], 0 offen sc1"); b2.e("s_mov_b64 exec, -1")
            b2.e(f"L_nocnt{par}:")
        d_mfma(b2, o); b2.e("s_nop 7"); d_cvt(b2)
        if o.drain: b2.e("s_waitcnt vmcnt(0)")
        b2.e("s_barrier")
        SW.append((a1, a2, b1, b2))
    parts = [(HX0, dict(X=0)), (HP, dict(X=0, W=0)), (H0, dict(X=0)), (H1a, dict(P=0)), (HQ, dict(G=0)), (H1, dict(P=0))]
    for st in range(8):
        for k, S in enumerate(SW[st & 1]):
            if not (st == 7 and k == 3): parts.append((S, dict(X=st, W=2 * st, P=0)))
    solve_vm(parts)
    g.pstamp(4)
    emit_stream(g, HP)
    w_voff(g, "s50")
    for t in w_srd(): e(t)
    e("s_mov_b32 s40, s24"); e("s_mov_b32 s41, s25"); e("s_mov_b32 s42, s26"); e("s_mov_b32 s43, 0x20000")
    late_srds()
    e("s_mov_b32 s16, s10"); e("s_mov_b32 s17, s11"); e("s_mov_b32 s18, 512"); e("s_mov_b32 s19, 0x20000")
    e("s_mov_b32 s47, 0x20000")
    e("v_lshl_add_u32 v113, v0, 1, s51")
    if o.pf:
        e("s_mov_b32 s44, s20"); e("s_mov_b32 s45, s21"); e("s_mov_b32 s46, s22")
        e("s_cmp_eq_u32 s50, 0"); e("s_cselect_b32 s57, 128, 0"); e("s_cselect_b32 s8, s46, 0")
        e("s_lshl_b32 s56, s54, 16"); e("s_add_u32 s56, s56, s57"); e(f"s_add_u32 s56, s56, {128 * (o.pfx0 - 1)}")
        e("v_lshl_add_u32 v19, v0, 10, s56")
        e("s_mov_b32 s63, 128")
        e("s_bitcmp0_b32 s50, 0"); e("s_cbranch_scc1 L_pfj")
        e("s_mov_b32 s44, s6"); e("s_mov_b32 s45, s7")
        e("s_cmp_eq_u32 s50, 1"); e(f"s_cselect_b32 s46, {W_BYTES}, 0"); e("s_mov_b32 s8, s46")
        e("s_lshr_b32 s57, s2, 3")
        e("s_lshr_b32 s56, s57, 2"); e("s_lshl_b32 s56, s56, 18")
        e("s_and_b32 s57, s57, 3"); e("s_lshl_b32 s57, s57, 13")
        e("s_add_u32 s56, s56, s57"); e(f"s_add_u32 s56, s56, {32768 * o.pfw0}")
        e("v_lshl_add_u32 v19, v0, 7, s56")
        e("s_mov_b32 s63, 32768")
        g.lab("L_pfj")
        e("s_cmp_eq_u32 s50, 2"); e("s_cselect_b32 s9, s46, 0")
    e(f"s_mov_b32 s4, 0x{STAB & 0xffffffff:08x}"); e(f"s_mov_b32 s5, 0x{STAB >> 32:08x}")
    e("v_and_b32 v20, 60, v0")
    e("v_lshrrev_b64 v[20:21], v20, s[4:5]")
    e("v_and_b32 v20, 15, v20")
    e("v_and_b32 v26, 15, v0")
    e("v_lshlrev_b32 v28, 2, v26")
    e("v_lshrrev_b64 v[28:29], v28, s[4:5]")
    e("v_and_b32 v28, 15, v28")
    e(f"s_mov_b32 s4, 0x{FTAB & 0xffffffff:08x}"); e(f"s_mov_b32 s5, 0x{FTAB >> 32:08x}")
    def swz(dst, idx, q):
        e(f"v_and_b32 v22, 15, v{idx}")
        e("v_lshlrev_b32 v22, 2, v22")
        e("v_lshrrev_b64 v[22:23], v22, s[4:5]")
        e("v_and_b32 v22, 7, v22")
        e(f"v_xor_b32 v22, v22, v{q}")
        e("v_lshlrev_b32 v22, 4, v22")
        e(f"v_lshl_add_u32 v{dst}, v{idx}, 7, v22")
    e("v_and_b32 v21, 3, v0")
    e("v_lshrrev_b32 v27, 4, v0")
    swz(30, 20, 21)
    swz(31, 28, 27)
    e("s_lshl_b32 s56, s50, 12")
    e(f"s_add_u32 s57, s56, {OB}")
    e(f"v_add_u32 v{TO}, s57, v30")
    e(f"s_add_u32 s57, s56, {2048+128}")
    e(f"v_add_u32 v{TE}, s57, v30"); e(f"v_add_u32 v{TE+1}, 2048, v{TE}")
    e(f"s_add_u32 s57, s56, {DB}")
    e(f"v_add_u32 v{WD}, s57, v31")
    e("s_cmp_lg_u32 s50, 3"); e("s_cbranch_scc1 L_nowrap")
    e("v_add_u32 v20, 1, v20")
    swz(TE + 1, 20, 21)
    g.lab("L_nowrap")
    e(f"v_xor_b32 v{TO+1}, 64, v{TO}"); e(f"v_xor_b32 v{TE+2}, 64, v{TE}"); e(f"v_xor_b32 v{TE+3}, 64, v{TE+1}")
    e(f"v_xor_b32 v{WD+1}, 64, v{WD}")
    e("v_and_b32 v20, 1, v0"); e("v_lshlrev_b32 v20, 4, v20")
    e("s_movk_i32 s56, 0x3f80"); e("v_lshlrev_b32 v20, v20, s56")
    e("v_bfe_u32 v21, v0, 1, 3"); e("v_lshlrev_b32 v27, 1, v27")
    for r in range(2):
        if r: e("v_add_u32 v27, 1, v27")
        e("v_cmp_eq_u32 vcc, v21, v27"); e("s_nop 1")
        e(f"v_cndmask_b32 v{HS+r}, 0, v20, vcc")
        e(f"v_lshlrev_b32 v23, 3, v{HS+r}")
        e(f"v_and_b32 v23, 0x80008000, v23")
        e(f"v_or_b32 v{HS+2+r}, v{HS+r}, v23")
    e("s_mov_b32 s61, 0")
    if o.hprio: e(f"s_setprio {o.hprio}")
    g.pstamp(7)
    emit_stream(g, H0)
    g.stamp(1)
    emit_stream(g, H1a)
    emit_stream(g, HQ)
    e("s_mov_b32 s62, 99")
    e("v_mov_b32 v117, 0"); e("v_mov_b32 v118, 0")
    e("s_cmp_lg_u32 s50, 3"); e("s_cbranch_scc1 L_noclean")
    e("v_lshl_add_u32 v117, v0, 3, s49")
    e("v_mov_b32 v118, -1"); e("v_mov_b32 v119, -1")
    e("buffer_store_dwordx2 v[118:119], v117, s[32:35], 0 offen sc1")
    e("s_and_b32 s62, s2, 3"); e("s_add_u32 s62, s62, 2")
    e("s_lshl_b32 s56, s2, 5"); e("s_and_b32 s56, s56, 128")
    e("v_mov_b32 v117, s56"); e("v_mov_b32 v118, 1")
    g.lab("L_noclean")
    emit_stream(g, H1)
    g.lab("L_hloop")
    for par in range(2):
        for k, S in enumerate(SW[par]):
            if o.hstamps and k in (1, 3):
                for r in range(70, 100, 2): e(f"s_mov_b64 s[{r}:{r+1}], s[{r+2}:{r+3}]")
                e("s_memtime s[100:101]"); e("s_waitcnt lgkmcnt(0)")
            if par == 1 and k == 3:
                e("s_cmp_eq_u32 s61, 8"); e("s_cbranch_scc1 L_hdone")
            emit_stream(g, S)
    e("s_branch L_hloop")
    g.lab("L_hdone")
    g.stamp(2)
    e("v_and_b32 v8, 1, v0"); e("v_lshlrev_b32 v8, 7, v8")
    e("buffer_load_dword v7, v8, s[36:39], 0 offen sc1")
    e("s_lshl_b32 s56, s50, 12"); e("s_add_u32 s56, s56, s48")
    e("v_lshl_add_u32 v6, v0, 4, s56")
    e("v_and_b32 v2, 31, v0"); e("v_lshrrev_b32 v3, 5, v0"); e("v_lshl_add_u32 v2, v2, 1, v3")
    e("s_lshl_b32 s56, s50, 9"); e(f"s_add_u32 s56, s56, {MISC}"); e("v_lshl_add_u32 v2, v2, 3, s56")
    e("s_waitcnt vmcnt(1)")
    GR = 128
    def gather_loads():
        for u in range(4): e(f"buffer_load_dwordx4 v[{GR+4*u}:{GR+4*u+3}], v6, s[32:35], 0 offen offset:{u*1024} {o.ld_flags}")
    g.bar()
    e("s_mov_b32 s60, 0")
    g.lab("L_chk")
    e("s_waitcnt vmcnt(0)")
    e(f"v_cmp_gt_u32 vcc, {0 if o.no_atomic else 0x80}, v7"); e("s_cbranch_vccz L_chk_ok")
    e("s_add_u32 s60, s60, 1"); e("s_cmp_ge_u32 s60, 0x100000"); e("s_cbranch_scc1 L_chk_ok")
    e("buffer_load_dword v7, v8, s[36:39], 0 offen sc1")
    e("s_branch L_chk")
    g.lab("L_chk_ok")
    NSET = o.nset
    def gl(k):
        for u in range(4): e(f"buffer_load_dwordx4 v[{GR+16*k+4*u}:{GR+16*k+4*u+3}], v6, s[32:35], 0 offen offset:{u*1024} {o.ld_flags}")
    gl(0)
    g.bar()
    if NSET > 1: gl(1)
    final_reads()
    if NSET > 2:
        e("s_waitcnt lgkmcnt(0)")
        gl(2)
    e("s_mov_b32 s60, 0")
    g.lab("L_poll")
    for k in range(NSET):
        R = GR + 16 * k
        e(f"s_waitcnt vmcnt({4*(NSET-1)})")
        e(f"v_or3_b32 v14, v{R+1}, v{R+3}, v{R+5}")
        e(f"v_or3_b32 v15, v{R+7}, v{R+9}, v{R+11}")
        e(f"v_or3_b32 v14, v14, v{R+13}, v{R+15}")
        e("v_or_b32 v14, v14, v15")
        e("v_cmp_gt_i32 vcc, 0, v14")
        e(f"s_cbranch_vccz L_poll_ok{k}")
        gl(k)
    e("s_add_u32 s60, s60, 1"); e("s_cmp_lt_u32 s60, 0x80000"); e("s_cbranch_scc1 L_poll")
    SUM = GR + 48
    for k in range(NSET):
        R = GR + 16 * k
        g.lab(f"L_poll_ok{k}")
        pk("add", SUM, R, R + 4); pk("add", SUM + 2, R + 2, R + 6); pk("add", SUM + 4, R + 8, R + 12); pk("add", SUM + 6, R + 10, R + 14)
        if k < NSET - 1: e("s_branch L_poll_sum")
    g.lab("L_poll_sum")
    g.stamp(4)
    pk("add", SUM, SUM, SUM + 4); pk("add", SUM + 2, SUM + 2, SUM + 6)
    e("s_nop 1")
    e(f"v_permlane32_swap_b32 v{SUM}, v{SUM+2}")
    e(f"v_permlane32_swap_b32 v{SUM+1}, v{SUM+3}")
    pk("add", SUM, SUM, SUM + 2)
    e(f"ds_write_b64 v2, v[{SUM}:{SUM+1}]")
    g.lab("L_final")
    Y = 64
    K1 = -2.0 * 0.7978845608028654 * 1.4426950408889634
    KAP = (-K1 * 0.044715) ** (1.0 / 3.0)
    e("v_lshlrev_b32 v23, 9, v20")
    e("v_lshl_add_u32 v23, v21, 4, v23")
    e("v_add_u32 v23, s51, v23")
    e("s_lshl_b32 s56, s3, 9"); e(f"s_add_u32 s56, s56, {MISC + 2048}")
    e("v_lshl_add_u32 v24, v21, 5, s56")
    e("v_lshl_add_u32 v25, v0, 2, s56")
    e("v_lshlrev_b32 v26, 3, v0"); e(f"v_add_u32 v26, {MISC}, v26")
    e("s_mov_b32 s60, 0x%08x" % f2u(K1 / KAP)); e("s_mov_b32 s61, s60")
    e("s_mov_b32 s62, 0x%08x" % f2u(KAP)); e("s_mov_b32 s63, s62")
    e("s_mov_b32 s64, 0x%08x" % f2u(1.0 / L))
    e("s_setprio 0")
    e("s_waitcnt vmcnt(1)" if False else "s_nop 0")
    e("v_lshlrev_b32 v114, 16, v114"); e("v_lshlrev_b32 v115, 16, v115")
    e("v_mul_f32 v114, s62, v114"); e("v_mul_f32 v115, s62, v115")
    e("s_waitcnt lgkmcnt(0)")
    g.bar()
    g.stamp(5)
    for q in range(4): e(f"ds_read_b64 v[{28+2*q}:{29+2*q}], v26 offset:{512*q}")
    e("s_waitcnt lgkmcnt(2)")
    pk("add", 28, 28, 30)
    e("s_waitcnt lgkmcnt(0)")
    pk("add", 32, 32, 34)
    pk("add", 28, 28, 32)
    e("v_mul_f32 v28, s64, v28")
    e("v_mul_f32 v29, s64, v29")
    e("v_fma_f32 v29, -v28, v28, v29")
    e("v_max_f32 v29, 0, v29")
    e("v_add_f32 v29, 0x%08x, v29" % f2u(1e-5))
    e("v_rsq_f32 v29, v29")
    e("s_nop 0")
    e("v_mul_f32 v29, v114, v29")
    e("v_fma_f32 v28, -v28, v29, v115")
    e("ds_write2_b32 v25, v29, v28 offset0:0 offset1:64")
    e("s_waitcnt lgkmcnt(0)")
    e("ds_read_b128 v[32:35], v24"); e("ds_read_b128 v[40:43], v24 offset:256")
    e("ds_read_b128 v[36:39], v24 offset:16"); e("ds_read_b128 v[44:47], v24 offset:272")
    e("s_waitcnt lgkmcnt(2)")
    for rg in range(4):
        y = Y + 8 * rg; P = 96 + 8 * rg
        for k in range(4):
            if rg == 0 and k == 2: e("s_waitcnt lgkmcnt(0)")
            pk("fma", y + 2 * k, y + 2 * k, 32 + 2 * k, 40 + 2 * k)
        for k in range(4): e(f"v_pk_fma_f32 v[{P+2*k}:{P+2*k+1}], v[{y+2*k}:{y+2*k+1}], v[{y+2*k}:{y+2*k+1}], s[60:61] neg_lo:[1,0,0] neg_hi:[1,0,0]")
        for k in range(4): pk("mul", P + 2 * k, P + 2 * k, y + 2 * k)
        for k in range(8): e(f"v_exp_f32 v{P+k}, v{P+k}")
        for k in range(4): e(f"v_pk_fma_f32 v[{P+2*k}:{P+2*k+1}], v[{P+2*k}:{P+2*k+1}], s[62:63], s[62:63]")
        for k in range(8): e(f"v_rcp_f32 v{P+k}, v{P+k}")
        for k in range(4): pk("mul", y + 2 * k, y + 2 * k, P + 2 * k)
        for k in range(4): e(f"v_cvt_pk_bf16_f32 v{48+4*rg+k}, v{y+2*k}, v{y+2*k+1}")
        fl = o.out_flags if rg < 3 or o.last_flags is None else o.last_flags
        e(f"buffer_store_dwordx4 v[{48+4*rg}:{51+4*rg}], v23, s[28:31], 0 offen {fl}")
        if rg < 3: e("v_add_u32 v23, 4096, v23")
    g.stamp(6)
    if o.stamps:
        e("s_waitcnt vmcnt(0)"); g.stamp(7)
    g.stamp_flush()
    g.lab("L_end")
    e("s_endpgm")
    g.l.append(f""".section .rodata,"a"
.p2align 6
.amdhsa_kernel {KN}
  .amdhsa_next_free_vgpr 256
  .amdhsa_next_free_sgpr 102
  .amdhsa_accum_offset 256
  .amdhsa_group_segment_fixed_size 0
  .amdhsa_kernarg_size 64
  .amdhsa_user_sgpr_count 2
  .amdhsa_user_sgpr_kernarg_segment_ptr 1
  .amdhsa_system_sgpr_workgroup_id_x 1
.end_amdhsa_kernel""")
    return "\n".join(g.l) + "\n"

def parser():
    ap = argparse.ArgumentParser()
    ap.add_argument("-o", default="k2.s")
    ap.add_argument("--stamps", action="store_true")
    for f in ("no-mfma", "no-read", "no-dma", "no-valu", "no-hvalu", "no-hwr", "no-mask", "no-xld", "no-hrd", "no-hw", "wfirst", "no-hwait", "hstamps", "no-atomic", "pstamps"): ap.add_argument("--" + f, action="store_true")
    ap.add_argument("--gammaoff", type=int, default=1)
    ap.add_argument("--alpha", type=int, default=20)
    ap.add_argument("--npe", type=int, default=6)
    ap.add_argument("--npre", type=int, default=3)
    ap.add_argument("--cdummy", type=int, default=0)
    ap.add_argument("--cap", type=int, default=2)
    ap.add_argument("--wpos", default="")
    ap.add_argument("--pfslot", type=int, default=44)
    ap.add_argument("--pfw", type=int, default=2)
    ap.add_argument("--pfx", type=int, default=2)
    ap.add_argument("--pfcode", type=int, default=6)
    ap.add_argument("--pfw0", type=int, default=2)
    ap.add_argument("--pfx0", type=int, default=3)
    ap.add_argument("--pfhalf", type=int, default=0)
    ap.add_argument("--delta", type=int, default=46)
    ap.add_argument("--dshift", type=int, default=0)
    ap.add_argument("--nd", type=int, default=2)
    ap.add_argument("--nad", type=int, default=1)
    ap.add_argument("--nag", type=int, default=6)
    ap.add_argument("--naa", type=int, default=17)
    ap.add_argument("--nbg", type=int, default=3)
    ap.add_argument("--mprio", type=int, default=1)
    ap.add_argument("--drain", type=int, default=0)
    ap.add_argument("--x1early", type=int, default=1)
    ap.add_argument("--align", type=int, default=3)
    ap.add_argument("--w1c", type=int, default=0)
    ap.add_argument("--npf0", type=int, default=0)
    ap.add_argument("--cpf", type=int, default=1)
    ap.add_argument("--rot", type=int, default=1)
    ap.add_argument("--x1share", type=int, default=1)
    ap.add_argument("--r1", type=int, default=4)
    ap.add_argument("--bara", type=int, default=1)
    ap.add_argument("--w1share", type=int, default=1)
    ap.add_argument("--sitea", type=int, default=1)
    ap.add_argument("--amp", default="")
    ap.add_argument("--last-flags", default=None)
    ap.add_argument("--mpoll", type=int, default=1)
    ap.add_argument("--psleep", type=int, default=0)
    ap.add_argument("--nset", type=int, default=2)
    ap.add_argument("--nbo", type=int, default=2)
    ap.add_argument("--wfl", default="")
    ap.add_argument("--xfl", default="nt")
    ap.add_argument("--vmargin", type=int, default=2)
    ap.add_argument("--lead", type=int, default=24)
    ap.add_argument("--wstep", type=int, default=3)
    ap.add_argument("--nwa", type=int, default=1)
    ap.add_argument("--nwb", type=int, default=5)
    ap.add_argument("--nb", type=int, default=16)
    ap.add_argument("--quiet", type=int, default=10)
    ap.add_argument("--nx1", type=int, default=5)
    ap.add_argument("--amargin", type=int, default=8)
    ap.add_argument("--minlat", type=int, default=8)
    ap.add_argument("--waitahead", type=int, default=12)
    ap.add_argument("--cprio", type=int, default=0)
    ap.add_argument("--hprio", type=int, default=0)
    ap.add_argument("--pf", type=int, default=1)
    ap.add_argument("--st-flags", default="sc1")
    ap.add_argument("--ld-flags", default="sc1")
    ap.add_argument("--out-flags", default="sc0 sc1")
    return ap
if __name__ == "__main__":
    o = parser().parse_args()
    open(o.o, "w").write(gen(o))
```
